```python
import torch

def _softmax(x, axis=-1):
    return torch.softmax(x, dim=axis)

def _gelu(x):
    return torch.nn.functional.gelu(x, approximate='tanh')

def _silu(x):
    return torch.nn.functional.silu(x)

def _sigmoid(x):
    return torch.sigmoid(x)

def _layernorm(x, axis=-1, eps=1e-05):
    m = x.mean(dim=axis, keepdim=True)
    v = x.var(dim=axis, keepdim=True, unbiased=False)
    return (x - m) / torch.sqrt(v + eps)

def _scatter_add(tgt, idx, src, axis=0):
    return tgt.clone().index_add_(axis, idx, src)

def _segment_sum(src, seg, n):
    out = torch.zeros((n,) + src.shape[1:], dtype=src.dtype)
    return out.index_add_(0, seg, src)

def _pad(x, pw):
    flat = tuple((v for pair in reversed(pw) for v in pair))
    return torch.nn.functional.pad(x, flat)
kernel_name = 'concat_heads__memory_aug_recurrent_mem_tr__linear_kernel_hedgehog__prompt'

def setup_inputs():

    _w = lambda a: (lambda t: t.to(torch.bfloat16) if t.is_floating_point() else t)(torch.as_tensor(a))

    def _A_setup():
        B, S, Dm = (1, 2048, 640)
        H, Dh = (32, 192)
        M, seg = (8, 32)
        seg = min(seg, S)
        S = S // seg * seg
        return {'x': _w((lambda *s: torch.randn(*s, dtype=torch.bfloat16) * 0.05)(B, S, Dm)), 'mem0': _w((lambda *s: torch.randn(*s, dtype=torch.bfloat16) * 1.6)(B, M, Dm)), 'Wq': _w((lambda *s: torch.randn(*s, dtype=torch.bfloat16) * 0.8)(Dm, H, Dh) * Dm ** (-0.5)), 'Wk': _w((lambda *s: torch.randn(*s, dtype=torch.bfloat16) * 0.8)(Dm, H, Dh) * Dm ** (-0.5)), 'Wv': _w((lambda *s: torch.randn(*s, dtype=torch.bfloat16) * 1.6)(Dm, H, Dh) * Dm ** (-0.5)), 'Wo': _w((lambda *s: torch.randn(*s, dtype=torch.bfloat16) * 1.6)(H, Dh, Dm) * (H * Dh) ** (-0.5)), 'seg_len': seg}
    _A_in = _A_setup()

    def _B_setup():
        B, S, D, H = (1, 2048, 640, 32)
        Dh = D // H
        return {'x': _w((lambda *s: torch.randn(*s, dtype=torch.bfloat16) * 0.8)(B, S, D)), 'wqkv': _w((lambda *s: torch.randn(*s, dtype=torch.bfloat16) * 0.8)(D, 3 * D)), 'w_phi': _w((lambda *s: torch.randn(*s, dtype=torch.bfloat16) * 0.8)(H, Dh, Dh) * Dh ** (-0.5)), 'wo': _w((lambda *s: torch.randn(*s, dtype=torch.bfloat16) * 0.05)(D, D))}
    _B_in = _B_setup()
    return {'A_x': _A_in['x'], 'A_mem0': _A_in['mem0'], 'A_Wq': _A_in['Wq'], 'A_Wk': _A_in['Wk'], 'A_Wv': _A_in['Wv'], 'A_Wo': _A_in['Wo'], 'A_seg_len': _A_in['seg_len'], 'B_x': _B_in['x'], 'B_wqkv': _B_in['wqkv'], 'B_w_phi': _B_in['w_phi'], 'B_wo': _B_in['wo']}

def reference(A_x, A_mem0, A_Wq, A_Wk, A_Wv, A_Wo, A_seg_len, B_x, B_wqkv, B_w_phi, B_wo):

    def _A_ref(x, mem0, Wq, Wk, Wv, Wo, seg_len):
        B, S, Dm = x.shape
        H, Dh = (Wq.shape[1], Wq.shape[2])
        M = mem0.shape[1]
        scale = Dh ** (-0.5)
        n_seg = S // seg_len
        L = M + seg_len
        idx = torch.arange(L)
        mask = (idx[:, None] < M) | (idx[:, None] >= idx[None, :])
        mem = mem0
        outs = []
        for s in range(n_seg):
            xs = x[:, s * seg_len:(s + 1) * seg_len, :].clone()
            h = torch.concatenate([mem, xs], axis=1)
            q = torch.einsum('btd,dhe->bhte', h, Wq)
            k = torch.einsum('btd,dhe->bhte', h, Wk)
            v = torch.einsum('btd,dhe->bhte', h, Wv)
            scores = torch.einsum('bhqe,bhke->bhqk', q, k) * scale
            scores = torch.where(mask[None, None], scores, -1000000000.0)
            p = _softmax(scores, axis=-1)
            o = torch.einsum('bhqk,bhke->bhqe', p, v)
            o = torch.einsum('bhte,hed->btd', o, Wo)
            mem = o[:, :M, :].clone()
            outs.append(o[:, M:, :])
        return torch.concatenate(outs, axis=1)

    def _B_ref(x, wqkv, w_phi, wo):
        B, S, D = x.shape
        H = 32
        Dh = D // H
        qkv = (lambda x, *d: x.permute(*d))((x @ wqkv).reshape(B, S, 3, H, Dh), 2, 0, 3, 1, 4)
        q, k, v = (qkv[0], qkv[1], qkv[2])
        pq = torch.einsum('bhsd,hdf->bhsf', q, w_phi)
        pk = torch.einsum('bhsd,hdf->bhsf', k, w_phi)
        phi_q = torch.concatenate([_softmax(pq, axis=-1), _softmax(-pq, axis=-1)], axis=-1)
        phi_k = torch.concatenate([_softmax(pk, axis=-1), _softmax(-pk, axis=-1)], axis=-1)
        kv = torch.einsum('bhsf,bhsd->bhfd', phi_k, v)
        z = torch.einsum('bhsf->bhf', phi_k)
        num = torch.einsum('bhqf,bhfd->bhqd', phi_q, kv)
        den = torch.einsum('bhqf,bhf->bhq', phi_q, z)[..., None] + 1e-06
        o = num / den
        return (lambda x, *d: x.permute(*d))(o, 0, 2, 1, 3).reshape(B, S, D) @ wo
    a = _A_ref(A_x, A_mem0, A_Wq, A_Wk, A_Wv, A_Wo, A_seg_len)
    b = _B_ref(B_x, B_wqkv, B_w_phi, B_wo)
    return torch.concatenate([a, b], axis=-1)
```

```python
import subprocess, sys, os, re
sys.path.insert(0, 'cdna_kernels')

_R = re.compile(r'^(-?\|?)([vas])(\d+)\|?$|^(-?)([vas])\[(\d+):(\d+)\]$')
def regs_of(tok):
    tok = tok.strip()
    if tok.startswith('abs(') or tok.startswith('-abs('):
        tok = tok[tok.index('(')+1:-1]
    if tok in ('vcc',): return {('s',106),('s',107)}
    if tok == 'vcc_lo': return {('s',106)}
    if tok == 'vcc_hi': return {('s',107)}
    if tok == 'exec': return {('s',126),('s',127)}
    if tok == 'exec_lo': return {('s',126)}
    if tok == 'exec_hi': return {('s',127)}
    if tok == 'm0': return {('s',124)}
    m = _R.match(tok)
    if not m: return set()
    if m.group(2): return {(m.group(2), int(m.group(3)))}
    return {(m.group(5), i) for i in range(int(m.group(6)), int(m.group(7))+1)}

TRANS = ('v_exp_f32','v_log_f32','v_rcp_f32','v_rsq_f32','v_sqrt_f32','v_sin_f32','v_cos_f32','v_rcp_iflag_f32')
EXEC = {('s',126),('s',127)}
class Ins:
    __slots__=('mn','ops','dst','src','kind','text','srcC','srcAB','dpp','wide','lds')
def parse(line):
    t = line.split(';')[0].strip()
    if not t or t.endswith(':') or t.startswith('.'): return None
    parts = t.split(None,1)
    mn = parts[0]; rest = parts[1] if len(parts)>1 else ''
    ops=[]; cur=''; d=0
    for ch in rest:
        if ch in '[(': d+=1
        if ch in '])': d-=1
        if ch==',' and d==0: ops.append(cur.strip()); cur=''
        else: cur+=ch
    if cur.strip(): ops.append(cur.strip())
    mods=''
    if ops:
        sp = ops[-1].split(None,1)
        ops[-1]=sp[0]; mods = sp[1] if len(sp)>1 else ''
    I=Ins(); I.mn=mn; I.ops=ops; I.text=t; I.dst=set(); I.src=set(); I.srcC=set(); I.srcAB=set()
    I.dpp = ('_dpp' in mn) or ('row_' in mods) or ('quad_perm' in mods); I.wide=False; I.lds=False
    R=[regs_of(o) for o in ops]
    if mn.startswith('v_mfma') :
        I.kind='mfma'; I.dst=R[0]; I.srcAB=R[1]|R[2]; I.srcC=R[3]; I.src=I.srcAB|I.srcC
    elif mn.startswith('v_smfmac'):
        I.kind='mfma'; I.dst=R[0]; I.srcAB=R[1]|R[2]|R[3]; I.srcC=R[0]; I.src=I.srcAB|I.srcC
    elif mn.startswith('v_'):
        I.kind='valu'
        if mn.startswith('v_permlane') or mn.startswith('v_swap'):
            I.dst=R[0]|R[1]; I.src=R[0]|R[1]
        elif mn.startswith('v_cmpx'):
            I.dst=R[0]|EXEC; I.src=set().union(*R[1:])
        elif mn.startswith(('v_add_co','v_sub_co','v_addc_co','v_subb_co','v_div_scale','v_mad_u64')):
            I.dst=R[0]|R[1]; I.src=set().union(*R[2:])
        else:
            I.dst=R[0]; I.src=set().union(*R[1:]) if len(R)>1 else set()
            if mn.startswith(('v_fmac','v_writelane')) or I.dpp: I.src|=R[0]
    elif mn.startswith('ds_'):
        I.kind='ds'
        if mn.startswith(('ds_read','ds_bpermute','ds_permute','ds_swizzle')): I.dst=R[0]; I.src=set().union(*R[1:])
        else: I.src=set().union(*R)
    elif mn.startswith(('buffer_','global_')):
        I.kind='vmem'
        I.lds = bool(re.search(r'\blds\b', mods)) or '_lds_' in mn
        if 'load' in mn and not I.lds: I.dst=R[0]; I.src=set().union(*R[1:])
        elif 'atomic' in mn:
            I.src=set().union(*R)
            if 'sc0' in mods: I.dst=R[0]
        else:
            I.src=set().union(*R) if R else set()
            if 'store' in mn and ('x3' in mn or 'x4' in mn): I.wide=True
    elif mn.startswith('s_'):
        I.kind='salu'
        if mn.startswith(('s_cmp','s_cbranch','s_branch','s_waitcnt','s_nop','s_barrier','s_endpgm','s_sleep','s_setprio','s_bitcmp')):
            I.src=set().union(*R) if R else set()
        else:
            I.dst=R[0] if R else set(); I.src=set().union(*R[1:]) if len(R)>1 else set()
            if 'saveexec' in mn: I.dst|=EXEC
    else:
        raise ValueError('unknown instr '+t)
    return I

def isv(r): return r[0] in 'va'
def need(prev, cur):
    n=0
    pv = {r for r in prev.dst if isv(r)}; ps = {r for r in prev.dst if r[0]=='s'}
    if prev.kind=='valu':
        if cur.kind=='mfma' and (pv & cur.src): n=max(n,2)
        if cur.kind=='mfma' and (ps & EXEC): n=max(n,4)
        if cur.kind=='valu':
            if cur.mn.startswith('v_permlane') and (pv & cur.src): n=max(n,2)
            if cur.mn.startswith('v_permlane') and (ps & EXEC): n=max(n,4)
            if cur.dpp and (pv & cur.src): n=max(n,2)
            if cur.dpp and (ps & EXEC): n=max(n,5)
            if cur.mn.startswith(('v_readlane','v_readfirstlane')) and (pv & cur.src): n=max(n,1)
            if cur.mn.startswith(('v_readlane','v_readfirstlane','v_writelane')) and (ps & EXEC): n=max(n,4)
            if cur.mn.startswith(('v_readlane','v_writelane')) and (ps & cur.src): n=max(n,4)
            if (ps & cur.src): n=max(n,2)
            if prev.mn.startswith(TRANS) and not cur.mn.startswith(TRANS) and (pv & cur.src): n=max(n,1)
        if cur.kind=='vmem' and (ps & cur.src): n=max(n,5)
        if cur.kind=='salu' and (ps & cur.src): n=max(n,1)
    if prev.kind=='mfma':
        big = '32x32' in prev.mn
        P = 12 if big else 8
        if cur.kind=='mfma':
            if prev.dst & cur.srcAB: n=max(n,P)
            if prev.dst & cur.srcC and prev.dst != cur.srcC: n=max(n,10 if big else 6)
            if prev.dst & cur.dst and not (prev.dst & cur.srcC): n=max(n,P)
        elif cur.kind in ('valu','ds','vmem'):
            if prev.dst & (cur.src|cur.dst): n=max(n,P)
            if cur.kind=='valu' and (prev.srcC & cur.dst): n=max(n,7 if big else 3)
    if prev.kind=='vmem' and prev.wide:
        data = regs_of(prev.ops[0]) if prev.mn.startswith('buffer') else regs_of(prev.ops[1])
        if data & cur.dst: n=max(n,2)
    if prev.kind=='salu' and (('s',124) in prev.dst) and cur.kind=='vmem' and cur.lds: n=max(n,1)
    return n

class Asm:
    def __init__(self):
        self.lines=[]; self.uid=0; self.hist=[]
        self.vm=[]; self.lg=[]; self.nops=0
    def _emit_ins(self, line):
        I=parse(line)
        if I is None:
            self.lines.append(line); return
        req=0; dist=0
        for p in reversed(self.hist):
            if dist>=12: break
            k=need(p,I)-dist
            if k>req: req=k
            dist+= (int(p.ops[0],0)+1) if p.mn=='s_nop' else 1
        if req>0:
            self.lines.append(f'    s_nop {req-1}'); self.hist.append(parse(f's_nop {req-1}')); self.nops+=1
        self.lines.append('    '+line.strip()); self.hist.append(I)
        if len(self.hist)>40: self.hist=self.hist[-24:]
        if I.kind=='vmem': self.vm.append(None)
        if I.kind=='ds': self.lg.append(None)
        if I.mn=='s_waitcnt':
            m=re.search(r'vmcnt\((\d+)\)',I.text)
            if m:
                n=int(m.group(1)); self.vm=self.vm[len(self.vm)-n:] if n<len(self.vm) and n>0 else ([] if n==0 else self.vm)
            m=re.search(r'lgkmcnt\((\d+)\)',I.text)
            if m:
                n=int(m.group(1)); self.lg=self.lg[len(self.lg)-n:] if n<len(self.lg) and n>0 else ([] if n==0 else self.lg)
    def __call__(self, s, tag=None):
        for l in s.strip('\n').split('\n'):
            l=l.strip()
            if not l: continue
            if l.startswith(';'): self.lines.append('    '+l); continue
            nv,nl=len(self.vm),len(self.lg)
            self._emit_ins(l)
            if tag is not None:
                if len(self.vm)>nv: self.vm[-1]=tag
                if len(self.lg)>nl: self.lg[-1]=tag
    def wait_vm(self, tag):
        idx=[i for i,t in enumerate(self.vm) if t==tag]
        if not idx: return
        n=len(self.vm)-1-idx[-1]
        self(f's_waitcnt vmcnt({min(n,63)})')
    def wait_lg(self, tag):
        idx=[i for i,t in enumerate(self.lg) if t==tag]
        if not idx: return
        n=len(self.lg)-1-idx[-1]
        self(f's_waitcnt lgkmcnt({min(n,15)})')
    def label(self, name):
        self.lines.append(name+':')
    def newlabel(self, base='L'):
        self.uid+=1
        return f'{base}_{self.uid}'
    def raw(self, s): self.lines.append(s)
    def settle(self):
        self('s_nop 7'); self('s_nop 3')
    def reset_hist(self): self.hist=[]; self.vm=[]; self.lg=[]
    def text(self): return '\n'.join(self.lines)+'\n'

def kernel_desc(name, vgpr=512, sgpr=102, accum=256):
    return f'''.section .rodata,"a"
.p2align 6
.amdhsa_kernel {name}
  .amdhsa_next_free_vgpr {vgpr}
  .amdhsa_next_free_sgpr {sgpr}
  .amdhsa_accum_offset {accum}
  .amdhsa_group_segment_fixed_size 0
  .amdhsa_kernarg_size 112
  .amdhsa_user_sgpr_count 2
  .amdhsa_user_sgpr_kernarg_segment_ptr 1
  .amdhsa_system_sgpr_workgroup_id_x 1
  .amdhsa_float_denorm_mode_32 3
.end_amdhsa_kernel
.text
'''

def build(asm_path, kernel_name, co_path):
    import cdna_launch as cl
    asm = open(asm_path).read()
    h = cl.with_harness_metadata(asm, kernel_name, 14, launch_lists=True)
    hp = co_path + '.harness.s'
    open(hp, 'w').write(h)
    r = subprocess.run(['clang', '-x', 'assembler', '-target', 'amdgcn-amd-amdhsa', '-mcpu=gfx950', hp, '-o', co_path], capture_output=True, text=True)
    if r.returncode:
        print(r.stderr[:6000]); raise SystemExit(1)
    launches = cl.launch_list_of(asm, True)
    prob = cl.address_register_problem(co_path, kernel_name, None if launches is None else cl.launch_list_kernel_names(launches))
    if prob:
        print(prob); raise SystemExit(1)
    os.remove(hp)
    print('built', co_path, os.path.getsize(co_path), 'src bytes', len(asm))
```

```python
import math, sys
from asmlib import *

NAME = 'concat_heads__memory_aug_recurrent_mem_tr__linear_kernel_hedgehog__prompt'
KN = NAME + '_kernel'
LDS_BYTES = 159744

T0 = 0
P0 = 80*16384
PROBE = P0 + 32*16384
M0W = 2<<20
FL0 = M0W + 8*4*10240
PX0 = 3<<20
U0 = 16<<20
BW0 = 112<<20
DBGW = 200<<20
CAP = 400000

GRP,SLOT,WAVE,STEP,HEAD,SCAP,FAST,SEL,PAR,QUAD = 's32','s33','s34','s35','s36','s37','s38','s39','s40','s41'
WS='s[8:11]'; DBG='s[12:15]'; W1='s[16:19]'; W2='s[20:23]'; XS='s[24:27]'; OUT='s[28:31]'
CNT='s42'
def vr(b,n=4): return f'v[{b}:{b+n-1}]'

class Gen:
    def __init__(self, opts):
        self.a = Asm(); self.o = opts
    def srd(self, reg, ptr, nbytes):
        b = int(reg[2:reg.index(':')])
        self.a(f's_mov_b32 s{b}, s{ptr}\ns_mov_b32 s{b+1}, s{ptr+1}\ns_mov_b32 s{b+2}, {nbytes}\ns_mov_b32 s{b+3}, 0x20000')
    def divmod_const(self, q, r, x, c):
        m = (65536 + c - 1)//c
        for t in range(0,1024): assert (t*m)>>16 == t//c
        self.a(f'v_mul_u32_u24 {q}, {m}, {x}\nv_lshrrev_b32 {q}, 16, {q}\nv_mul_u32_u24 {r}, {c}, {q}\nv_sub_u32 {r}, {x}, {r}')
    def timeout(self, loop):
        self.a(f's_add_u32 {CNT}, {CNT}, 1\ns_cmp_lt_u32 {CNT}, {SCAP}\ns_cbranch_scc1 {loop}\ns_mov_b32 {SCAP}, 1')
    def arrive(self):
        a=self.a; l=a.newlabel('ARR')
        a(f'''s_waitcnt vmcnt(0)
        s_barrier
        s_cmp_lg_u32 {WAVE}, 0
        s_cbranch_scc1 {l}
        s_mov_b64 exec, 1
        v_mov_b32 v2, 1
        v_mov_b32 v3, 128
        buffer_atomic_add v2, v3, {DBG}, 0 offen
        s_mov_b64 exec, -1''')
        a.label(l)
    def wait_start(self):
        a=self.a; l=a.newlabel('WST'); lo=a.newlabel('WSO')
        a(f's_mov_b32 {CNT}, 0\nv_mov_b32 v3, 128')
        a.label(l)
        a(f'''buffer_load_dwordx2 v[4:5], v3, {DBG}, 0 offen sc1
        s_waitcnt vmcnt(0)
        v_readfirstlane_b32 s44, v4
        s_cmp_ge_u32 s44, 256
        s_cbranch_scc1 {lo}
        s_sleep 8''')
        self.timeout(l)
        a.label(lo)
        a(f'''s_lshl_b32 s44, {GRP}, 2
        v_mov_b32 v3, s44
        buffer_load_dword v4, v3, {DBG}, 0 offen sc1
        v_mov_b32 v3, 132
        buffer_load_dword v5, v3, {DBG}, 0 offen sc1
        s_waitcnt vmcnt(0)
        v_readfirstlane_b32 s44, v4
        v_readfirstlane_b32 s45, v5
        s_cmp_ge_u32 s44, 32
        s_cselect_b32 {FAST}, 1, 0
        s_and_b32 {SEL}, s45, 1''')
        if self.o.get('slow'): a(f's_mov_b32 {FAST}, 0')
    def wait_flags(self, voff, soff, thr):
        a=self.a; l=a.newlabel('WF'); lo=a.newlabel('WFO')
        a(f's_mov_b32 {CNT}, 0\ns_mov_b64 exec, 0xff')
        a.label(l)
        a(f'''buffer_load_dword v2, {voff}, {WS}, {soff} offen sc1
        s_waitcnt vmcnt(0)
        v_cmp_gt_u32 vcc, {thr}, v2
        s_cbranch_vccz {lo}
        s_sleep 1''')
        self.timeout(l)
        a.label(lo)
        a('s_mov_b64 exec, -1')
    def set_flag(self, kind):
        a=self.a; l=a.newlabel('SF')
        a(f'''s_cmp_lg_u32 {WAVE}, 0
        s_cbranch_scc1 {l}
        s_add_u32 s44, {STEP}, 1
        v_mov_b32 v2, s44
        v_mov_b32 v3, 0
        s_mov_b64 exec, 1
        buffer_store_dword v2, v3, {WS}, s60 offen sc1
        s_mov_b64 exec, -1''')
        a.label(l)

    def stamp(self,k):
        if self.o.get('prof'): self.a(f's_memrealtime s[{68+2*k}:{69+2*k}]')
    def stamp_out(self):
        if not self.o.get('prof'): return
        a=self.a; l=a.newlabel('ST')
        a(f's_waitcnt lgkmcnt(0)\ns_cmp_lg_u32 {WAVE}, 0\ns_cbranch_scc1 {l}\ns_mov_b64 exec, 1')
        a(f's_lshl_b32 s44, {GRP}, 5\ns_add_u32 s44, s44, {SLOT}\ns_mul_i32 s44, s44, 66\ns_add_u32 s44, s44, {STEP}\ns_lshl_b32 s44, s44, 5\ns_add_u32 s44, s44, {DBGW+(1<<20)}\nv_mov_b32 v3, 0')
        a('s_mov_b32 s82, s96')
        for k in range(8):
            a(f'v_mov_b32 v2, s{68+2*k}\nbuffer_store_dword v2, v3, {WS}, s44 offen offset:{4*k}')
        a('s_mov_b64 exec, -1')
        a.label(l)
    def frag_map(self, ldsA, ldsB):
        lds = list(ldsA)+list(ldsB); mp={}; k=0
        for f in range(60):
            if f in lds: mp[f]=('l',lds.index(f))
            else:
                mp[f]=('a',8*k) if k<32 else ('v',144+8*(k-32)); k+=1
        assert k==46
        return mp
    STG=88
    def wreg(self, mp, f, half=None):
        t,b = mp[f]
        if t=='l': t,b='v', self.STG+8*(b%7)
        if half is None: return f'{t}[{b}:{b+7}]'
        return f'{t}[{b+4*half}:{b+4*half+3}]'
    def stage(self, mp, which):
        for i in range(7):
            idx=7*which+i
            for hf in range(2):
                self.a(f'ds_read_b128 {vr(self.STG+8*i+4*hf)}, v10 offset:{idx*2048+hf*1024}', tag=('stg',idx))
    def need_w(self, mp, f):
        t,b=mp[f]
        if t=='l': self.a.wait_lg(('stg',b))
    def trdst(self, mp, f, q4):
        t,b=mp[f]
        if t=='l': t,b='v',24+8*b
        return f'{t}[{b+2*q4}:{b+2*q4+1}]'
    def store_lds_frags(self):
        a=self.a
        a('s_waitcnt lgkmcnt(0)\ns_barrier')
        for idx in range(14):
            for hf in range(2):
                a(f'ds_write_b128 v10, {vr(24+8*idx+4*hf)} offset:{idx*2048+hf*1024}')
        a('s_waitcnt lgkmcnt(0)')
    def run_stages(self, stages):
        a=self.a; n=len(stages)
        for i in range(min(3,n)): stages[i][0](i, ('wd',i))
        for i in range(n):
            a.wait_vm(('wd',i))
            stages[i][1](i%3)
            if i+3<n:
                a('s_waitcnt lgkmcnt(0)')
                stages[i+3][0](i%3, ('wd',i+3))
    XB=114688
    def x_dma(self, step=STEP):
        a=self.a
        a(f's_mul_i32 s44, {step}, 40960\ns_mul_i32 s45, {WAVE}, 320\ns_add_u32 s44, s44, s45\ns_add_u32 s45, s44, 20480\ns_mul_i32 s46, {WAVE}, 10240\ns_add_u32 s46, s46, {self.XB}')
        for i in range(10):
            a(f's_add_u32 m0, s46, {i*1024}')
            if i>=2: a(f's_add_u32 s{44+(i&1)}, s{44+(i&1)}, 64')
            a(f'buffer_load_dwordx4 v11, {XS}, s{44+(i&1)} offen lds', tag='x')
    MF=24
    def check(self, regs):
        a=self.a; regs=list(regs)
        a(f'v_max3_u32 v2, v{regs[0]}, v{regs[1]}, v{regs[2]}'); r=regs[3:]
        while len(r)>=2:
            a(f'v_max3_u32 v2, v2, v{r[0]}, v{r[1]}'); r=r[2:]
        if r: a(f'v_max_u32 v2, v2, v{r[0]}')
        a('v_cmp_eq_u32 vcc, -1, v2')
    def m_loads(self, bs):
        for b in bs:
            so = 's47' if b<4 else ('s48' if b<8 else 's49')
            self.a(f'buffer_load_dwordx4 {vr(self.MF+4*b)}, v12, {WS}, {so} offen offset:{(b%4)*1024} sc1', tag=('m',b))
    def m_stream(self, work, cold):
        a=self.a; NP=3
        a(f'''s_lshr_b32 s44, {STEP}, 1
        s_and_b32 s44, s44, 3
        s_mul_i32 s44, s44, 10240
        s_mul_i32 s47, {GRP}, 40960
        s_add_u32 s47, s47, s44
        s_add_u32 s47, s47, {M0W}
        s_add_u32 s48, s47, 4096
        s_add_u32 s49, s47, 8192
        s_mov_b32 {CNT}, 0''')
        self.stamp(1)
        l=a.newlabel('PM'); lo=a.newlabel('PMO')
        a.label(l)
        self.m_loads(range(NP))
        a('s_waitcnt vmcnt(0)')
        self.check(range(self.MF,self.MF+4*NP))
        a(f's_cbranch_vccz {lo}')
        self.timeout(l)
        a.label(lo)
        self.m_loads(range(NP,10))
        self.stamp(2)
        for b in range(10):
            if b>=NP:
                ls=a.newlabel('MS'); lb=a.newlabel('MB')
                a.label(lb)
                a(f's_waitcnt vmcnt({9-b})')
                self.check(range(self.MF+4*b,self.MF+4*b+4))
                a(f's_cbranch_vccnz {ls}')
                lc=a.newlabel('MC'); a.label(lc)
                cold.append((ls,lb,lc,b))
            work(b)
    def m_cold(self, cold):
        a=self.a
        for ls,lb,lc,b in cold:
            a.label(ls)
            a.reset_hist()
            a(f's_add_u32 {CNT}, {CNT}, 1\ns_cmp_ge_u32 {CNT}, {SCAP}\ns_cbranch_scc1 {ls}_x')
            self.m_loads(range(b,10))
            a(f's_branch {lb}')
            a.label(ls+'_x')
            a(f's_mov_b32 {SCAP}, 1\ns_branch {lc}')
    def common_sv(self):
        a=self.a
        a(f'''s_and_b32 {HEAD}, {SLOT}, 7
        s_lshl_b32 s44, {QUAD}, 3
        s_add_u32 {HEAD}, {HEAD}, s44
        v_lshlrev_b32 v12, 4, v1                 ; lane*16
        s_mul_i32 s44, {WAVE}, 28672
        v_add_u32 v10, s44, v12
        v_and_b32 v2, 15, v1
        v_lshrrev_b32 v3, 4, v1
        v_mul_u32_u24 v11, 1280, v2
        v_lshl_add_u32 v11, v3, 4, v11
        v_add_u32 v13, {self.XB}, v12
        v_and_b32 v4, 8, v1
        v_cmp_eq_u32 vcc, 0, v4
        v_mov_b32 v4, 0xeeee
        v_mov_b32 v5, 0x4444
        v_cndmask_b32 v9, v4, v5, vcc
        ''')
        self.srd(XS, 68, 2048*1280)

    def role_S(self):
        a=self.a; o=self.o
        mp=self.frag_map(range(0,7),range(30,37))
        QM=self.XB; KM=QM+6144; QX=KM+6144; KX=QX+12288
        a.label('L_S'); a.reset_hist()
        self.common_sv()
        a(f'''s_lshl_b32 s44, {PAR}, 5
        s_add_u32 s44, s44, {HEAD}
        s_lshl_b32 s60, s44, 7
        s_add_u32 s60, s60, {FL0+8192}
        s_lshl_b32 s61, {WAVE}, 2
        s_add_u32 s61, s61, {QUAD}
        s_lshl_b32 s61, s61, 14
        s_and_b32 s44, {SLOT}, 7
        s_mul_i32 s44, s44, 640
        s_add_u32 s61, s61, s44
        s_add_u32 s61, s61, {P0}
        v_mov_b32 v20, -1
        v_mov_b32 v21, -1
        v_mov_b32 v22, -1
        v_mov_b32 v23, -1
        s_mov_b32 exec_hi, 0xff''')
        for sl in range(2):
            for hf in range(2):
                a(f's_add_u32 s44, s61, {sl*16*16384+hf*8192}\nbuffer_store_dwordx4 v[20:23], v12, {WS}, s44 offen sc1')
        a(f's_mov_b64 exec, 1\nv_mov_b32 v2, 0\nbuffer_store_dword v2, v2, {WS}, s60 offen sc1\ns_mov_b64 exec, -1')
        self.arrive()
        a(f'''s_cmp_lt_u32 {WAVE}, 2
        s_cselect_b32 s16, s72, s74
        s_cselect_b32 s17, s73, s75
        s_mov_b32 s18, {640*12288}
        s_mov_b32 s19, 0x20000
        s_mul_i32 s50, {HEAD}, 384
        s_and_b32 s44, {WAVE}, 1
        s_mul_i32 s44, s44, 192
        s_add_u32 s50, s50, s44
        s_mul_i32 s51, {WAVE}, 36864''')
        for r3 in range(3):
            a(f'v_add_u32 v2, {64*r3}, v1')
            self.divmod_const('v3','v4','v2',12)
            a(f'v_mul_u32_u24 v3, 12288, v3\nv_lshl_add_u32 v{14+r3}, v4, 4, v3')
        a(f'''v_lshrrev_b32 v2, 4, v1
        v_bfe_u32 v3, v1, 2, 2
        v_lshl_add_u32 v2, v2, 3, v3
        v_mul_u32_u24 v2, 192, v2
        v_and_b32 v3, 3, v1
        v_lshl_add_u32 v2, v3, 3, v2
        v_add_u32 v17, s51, v2''')
        stages=[]
        for b in range(10):
            def iss(slot,tag,b=b):
                for i in range(12):
                    aa,r3=divmod(i,3)
                    a(f's_add_u32 m0, s51, {slot*12288+i*1024}')
                    if r3==0: a(f's_add_u32 s44, s50, {(64*b+16*aa)*12288}')
                    a(f'buffer_load_dwordx4 v{14+r3}, {W1}, s44 offen lds', tag=tag)
            def rd(slot,b=b):
                for T in range(6):
                    for q4 in range(4):
                        a(f'ds_read_b64_tr_b16 {self.trdst(mp,b*6+T,q4)}, v17 offset:{slot*12288+(32*(q4>>1)+4*(q4&1))*192+32*T}')
            stages.append((iss,rd))
        self.run_stages(stages)
        self.store_lds_frags()
        a(f'''v_and_b32 v2, 15, v1                ; n
        v_lshrrev_b32 v3, 4, v1                  ; G
        v_lshrrev_b32 v4, 2, v2
        v_add_u32 v4, v4, v3
        v_and_b32 v4, 3, v4
        v_lshlrev_b32 v4, 3, v4
        v_lshl_add_u32 v14, v2, 5, v4
        s_mul_i32 s44, {WAVE}, 3072
        s_add_u32 s44, s44, {QM}
        v_add_u32 v14, s44, v14
        v_and_b32 v4, 3, v1
        v_add_u32 v4, v4, v3
        v_and_b32 v4, 3, v4
        v_lshlrev_b32 v4, 3, v4
        v_lshrrev_b32 v5, 2, v1                  ; 4g + rr
        v_lshl_add_u32 v15, v5, 5, v4
        v_add_u32 v15, {QM}, v15
        s_lshr_b32 s44, {WAVE}, 1
        s_mul_i32 s44, s44, 12288
        s_and_b32 s45, {WAVE}, 1
        s_mul_i32 s46, s45, 3072
        s_add_u32 s44, s44, s46
        s_add_u32 s44, s44, {QX}
        v_add_u32 v16, s44, v12
        v_lshrrev_b32 v4, 1, v3
        v_lshl_add_u32 v4, v4, 4, v2
        v_lshlrev_b32 v4, 4, v4
        v_and_b32 v5, 1, v3
        v_lshl_add_u32 v17, v5, 3, v4
        v_lshlrev_b32 v4, 4, v2
        v_lshl_add_u32 v4, v5, 3, v4
        v_lshrrev_b32 v5, 1, v3
        v_lshl_add_u32 v18, v5, 2, v4            ; n*16 + 8(G&1) + 4(G>>1)
        s_lshl_b32 s45, s45, 4
        v_lshlrev_b32 v4, 2, v3
        v_sub_u32 v19, v2, v4
        v_add_u32 v19, s45, v19                  ; 16mt + q - 4G
        s_mov_b32 s62, {hex(int.from_bytes(__import__("struct").pack("<f", 192**-0.5*math.log2(math.e)),"little"))}
        s_mov_b32 {STEP}, {PAR}''')
        self.wait_start()
        a(f's_xor_b32 s44, {SEL}, {PAR}\ns_xor_b32 s44, s44, 1\ns_and_b32 s44, s44, 1\ns_lshl_b32 s44, s44, 13\ns_add_u32 s61, s61, s44')
        a('s_barrier')
        a.label('L_S_loop'); a.reset_hist()
        self.stamp(0)
        self.x_dma()
        self.stage(mp,0)
        ACC=24; XF=72
        a('s_waitcnt vmcnt(0)\ns_barrier')
        def xrd(ks):
            for mt in range(2):
                a(f'ds_read_b128 {vr(XF+8*(ks&1)+4*mt)}, v13 offset:{(ks*2+mt)*1024}', tag=('xf',ks))
        xrd(0)
        for ks in range(20):
            if ks+1<20: xrd(ks+1)
            a.wait_lg(('xf',ks))
            for T in range(6):
                f=(ks>>1)*6+T
                self.need_w(mp,f)
                for mt in range(2):
                    d=vr(ACC+8*T+4*mt)
                    a(f'v_mfma_f32_16x16x32_bf16 {d}, {self.wreg(mp,f,ks&1)}, {vr(XF+8*(ks&1)+4*mt)}, {d if ks else 0}')
            if ks==3: self.stage(mp,1)
        self.stage(mp,0)
        a('s_barrier')
        for mt in range(2):
            for u in range(3):
                for k in range(4):
                    T=2*u+(k>>1); s=ACC+8*T+4*mt+2*(k&1)
                    a(f'v_cvt_pk_bf16_f32 v{XF+8*(u&1)+k}, v{s}, v{s+1}')
                a(f'ds_write_b128 v16, {vr(XF+8*(u&1))} offset:{(mt*6+u)*1024}')
        CA=64
        a('s_waitcnt lgkmcnt(0)')
        for i in range(24): a(f'v_mov_b32 v{CA+i}, 0')
        a('s_barrier')
        a(f's_lshr_b32 s44, {STEP}, 1\ns_and_b32 s44, s44, 1\ns_lshl_b32 s44, s44, 18\ns_add_u32 s52, s61, s44\ns_xor_b32 s44, s44, {1<<18}\ns_add_u32 s53, s61, s44')
        cold=[]
        KXF=88
        def work(b):
            for T in range(6):
                f=b*6+T
                self.need_w(mp,f)
                a(f'v_smfmac_f32_16x16x64_bf16 {vr(CA+4*T)}, {vr(self.MF+4*b)}, {self.wreg(mp,f)}, v9')
            if b==1: self.stage(mp,1)
            if b==6:
                for i in range(12):
                    a(f'ds_read_b128 {vr(KXF+4*i)}, v13 offset:{KX-self.XB+i*1024}', tag='kx')
        self.m_stream(work,cold)
        self.stamp(3)
        for T in range(6):
            a(f'v_cvt_pk_bf16_f32 v{24+2*T}, v{CA+4*T}, v{CA+4*T+1}\nv_cvt_pk_bf16_f32 v{25+2*T}, v{CA+4*T+2}, v{CA+4*T+3}')
            a(f'ds_write_b64 v14, v[{24+2*T}:{25+2*T}] offset:{T*512}')
        a('s_waitcnt lgkmcnt(0)\ns_barrier')
        self.stamp(4)
        QF=24
        def kmf(u): return 48+4*u if u<4 else 136+4*(u-4)
        for u in range(6):
            for p in range(2):
                a(f'ds_read_b64_tr_b16 v[{QF+4*u+2*p}:{QF+4*u+2*p+1}], v15 offset:{(32*u+16*p)*32}', tag=('q',u))
        for u in range(6):
            for p in range(2):
                a(f'ds_read_b64_tr_b16 v[{kmf(u)+2*p}:{kmf(u)+2*p+1}], v15 offset:{6144+(32*u+16*p)*32}', tag=('km',u))
        S0,S1,S2=64,68,72
        def smm(waitq):
            for u in range(6):
                if waitq: a.wait_lg((waitq,u))
                a(f'v_mfma_f32_16x16x32_bf16 {vr(S1)}, {vr(KXF+4*u)}, {vr(QF+4*u)}, {vr(S1) if u else 0}')
                a(f'v_mfma_f32_16x16x32_bf16 {vr(S2)}, {vr(KXF+24+4*u)}, {vr(QF+4*u)}, {vr(S2) if u else 0}')
            for u in range(6):
                a.wait_lg(('km',u))
                a(f'v_mfma_f32_16x16x32_bf16 {vr(S0)}, {vr(kmf(u))}, {vr(QF+4*u)}, {vr(S0) if u else 0}')
        smm('q')
        E=76
        for r in range(4):
            a(f'v_add_f32_dpp v{E+r}, v{S1+r}, v{S1+r} row_ror:8 row_mask:0xf bank_mask:0x3')
            a(f'v_add_f32_dpp v{E+r}, v{S2+r}, v{S2+r} row_ror:8 row_mask:0xf bank_mask:0xc')
        a(f'''v_permlane32_swap_b32 v{S0}, v{S0+2}
        v_permlane32_swap_b32 v{S0+1}, v{S0+3}
        v_add_f32 v{S0}, v{S0}, v{S0+2}
        v_add_f32 v{S0+1}, v{S0+1}, v{S0+3}
        v_max3_f32 v82, v{E}, v{E+1}, v{E+2}
        v_add_f32_dpp v{E+4}, v{S0}, v{S0} row_ror:8 row_mask:0xf bank_mask:0x3
        v_add_f32_dpp v{E+4}, v{S0+1}, v{S0+1} row_ror:8 row_mask:0xf bank_mask:0xc
        v_max3_f32 v82, v82, v{E+3}, v{E+4}''')
        def xred(op, ror):
            if ror: a(f'{op}_dpp v82, v82, v82 row_ror:8 row_mask:0xf bank_mask:0xf')
            a(f'''v_mov_b32 v83, v82
            v_permlane16_swap_b32 v82, v83
            {op} v82, v82, v83
            v_mov_b32 v83, v82
            v_permlane32_swap_b32 v82, v83
            {op} v82, v82, v83''')
        def soft(vals, ror):
            xred('v_max_f32', ror)
            a('v_mul_f32 v82, s62, v82')
            for v in vals: a(f'v_fma_f32 v{v}, v{v}, s62, -v82')
            for v in vals: a(f'v_exp_f32 v{v}, v{v}')
            a(f'v_add_f32 v82, v{vals[0]}, v{vals[1]}')
            for v in vals[2:]: a(f'v_add_f32 v82, v82, v{v}')
            xred('v_add_f32', ror)
            a('v_rcp_f32 v82, v82')
            for v in vals: a(f'v_mul_f32 v{v}, v{v}, v82')
        soft([E+i for i in range(5)], True)
        self.stamp(5)
        a(f'''v_cvt_pk_bf16_f32 v84, v{E}, v{E+1}
        v_cvt_pk_bf16_f32 v85, v{E+2}, v{E+3}
        v_mov_b32_dpp v83, v{E+4} row_ror:8 row_mask:0xf bank_mask:0xf
        v_min_u32 v84, -2, v84
        v_min_u32 v85, -2, v85
        buffer_store_dwordx2 v[84:85], v17, {WS}, s52 offen sc1
        v_cvt_pk_bf16_f32 v86, v{E+4}, v83
        s_mov_b32 exec_lo, 0x00ff00ff
        s_mov_b32 exec_hi, 0x00ff00ff
        v_min_u32 v86, -2, v86
        buffer_store_dword v86, v18, {WS}, s52 offen offset:512 sc1
        s_mov_b32 exec_lo, -1
        s_mov_b32 exec_hi, 0xff
        buffer_store_dwordx4 v[20:23], v12, {WS}, s53 offen sc1
        s_mov_b64 exec, -1
        s_cmp_ge_u32 {WAVE}, 2
        s_cbranch_scc1 L_S_nox''')
        a(f's_mul_i32 s44, {WAVE}, 6144\nv_add_u32 v3, s44, v13')
        for u in range(6):
            a(f'ds_read_b128 {vr(QF+4*u)}, v3 offset:{QX-self.XB+u*1024}', tag=('qx',u))
        smm('qx')
        a(f'''v_permlane32_swap_b32 v{S0}, v{S0+2}
        v_permlane32_swap_b32 v{S0+1}, v{S0+3}
        v_add_f32 v{S0}, v{S0}, v{S0+2}
        v_add_f32 v{S0+1}, v{S0+1}, v{S0+3}
        v_mov_b32 v83, 0xff7fffff''')
        for kt in range(2):
            for r in range(4):
                a(f'v_cmp_le_i32 vcc, {16*kt+r}, v19\nv_cndmask_b32 v{S1+4*kt+r}, v83, v{S1+4*kt+r}, vcc')
        vals=[S0,S0+1]+[S1+i for i in range(8)]
        a(f'v_max3_f32 v82, v{vals[0]}, v{vals[1]}, v{vals[2]}')
        for i in range(3,9,2): a(f'v_max3_f32 v82, v82, v{vals[i]}, v{vals[i+1]}')
        a(f'v_max_f32 v82, v82, v{vals[9]}')
        soft(vals, False)
        a(f'''v_cvt_pk_bf16_f32 v84, v{S1}, v{S1+1}
        v_cvt_pk_bf16_f32 v85, v{S2}, v{S2+1}
        v_cvt_pk_bf16_f32 v86, v{S1+2}, v{S1+3}
        v_cvt_pk_bf16_f32 v87, v{S2+2}, v{S2+3}
        v_cvt_pk_bf16_f32 v83, v{S0}, v{S0+1}
        s_lshl_b32 s44, {STEP}, 5
        s_add_u32 s44, s44, {HEAD}
        s_mul_i32 s44, s44, 2560
        s_add_u32 s44, s44, {PX0}
        s_lshl_b32 s45, {WAVE}, 10
        s_add_u32 s45, s45, s44
        s_lshl_b32 s46, {WAVE}, 8
        s_add_u32 s46, s46, s44
        buffer_store_dwordx4 v[84:87], v12, {WS}, s45 offen sc1
        buffer_store_dword v83, v18, {WS}, s46 offen offset:2048 sc1''')
        a.label('L_S_nox')
        a('s_waitcnt vmcnt(0) lgkmcnt(0)\ns_barrier')
        self.set_flag(1)
        self.stamp(6); self.stamp_out()
        a(f's_add_u32 {STEP}, {STEP}, 2\ns_cmp_lt_u32 {STEP}, 64\ns_cbranch_scc1 L_S_loop\ns_endpgm')
        self.m_cold(cold)

    def role_V(self):
        a=self.a
        mp=self.frag_map(range(0,7),range(39,46))
        VX=self.XB; VM=self.XB+40960
        a.label('L_V'); a.reset_hist()
        self.common_sv()
        a(f'''s_lshl_b32 s44, {PAR}, 5
        s_add_u32 s44, s44, {HEAD}
        s_lshl_b32 s60, s44, 7
        s_add_u32 s60, s60, {FL0}
        s_mul_i32 s61, {WAVE}, {10*16384}
        s_lshl_b32 s44, {HEAD}, 8
        s_add_u32 s61, s61, s44
        s_add_u32 s61, s61, {T0}
        v_and_b32 v2, 15, v1
        v_lshrrev_b32 v3, 4, v1
        v_lshlrev_b32 v4, 14, v3
        v_lshl_add_u32 v8, v2, 4, v4             ; G*16384 + n*16
        v_mov_b32 v20, -1
        v_mov_b32 v21, -1
        v_mov_b32 v22, -1
        v_mov_b32 v23, -1''')
        def poisonT(base, data='v[20:23]'):
            for i in range(3):
                if i==2: a('s_mov_b32 exec_hi, 0')
                a(f's_add_u32 s44, {base}, {i*4*16384}\nbuffer_store_dwordx4 {data}, v8, {WS}, s44 offen sc1')
            a('s_mov_b32 exec_hi, -1')
        for sl in range(2):
            for hf in range(2):
                a(f's_add_u32 s45, s61, {sl*40*16384+hf*8192}')
                poisonT('s45')
        a(f's_mov_b64 exec, 1\nv_mov_b32 v2, 0\nbuffer_store_dword v2, v2, {WS}, s60 offen sc1\ns_mov_b64 exec, -1')
        self.arrive()
        self.srd(W1, 76, 640*12288); self.srd(W2, 78, 6144*1280)
        a(f'''s_mul_i32 s50, {HEAD}, 384
        s_mul_i32 s44, {WAVE}, 96
        s_add_u32 s50, s50, s44
        s_mul_i32 s51, {WAVE}, 36864
        s_mul_i32 s52, {HEAD}, {192*1280}
        s_mul_i32 s44, {WAVE}, 320
        s_add_u32 s52, s52, s44''')
        for r3 in range(3):
            a(f'v_add_u32 v2, {64*r3}, v1')
            self.divmod_const('v3','v4','v2',6)
            a(f'v_mul_u32_u24 v3, 12288, v3\nv_lshl_add_u32 v{136+r3}, v4, 4, v3')
        for r5 in range(5):
            a(f'v_add_u32 v2, {64*r5}, v1')
            self.divmod_const('v3','v4','v2',10)
            a(f'v_mul_u32_u24 v3, 1280, v3\nv_lshl_add_u32 v{139+r5}, v4, 4, v3')
        a(f'''v_lshrrev_b32 v2, 4, v1
        v_bfe_u32 v3, v1, 2, 2
        v_lshl_add_u32 v2, v2, 3, v3
        v_mul_u32_u24 v2, 96, v2
        v_and_b32 v3, 3, v1
        v_lshl_add_u32 v2, v3, 3, v2
        v_add_u32 v17, s51, v2
        v_lshrrev_b32 v2, 2, v1
        v_mul_u32_u24 v2, 160, v2
        v_lshl_add_u32 v2, v3, 3, v2
        v_add_u32 v18, s51, v2''')
        stages=[]
        for bp in range(5):
            def iss(slot,tag,bp=bp):
                for i in range(12):
                    aa,r3=divmod(i,3)
                    a(f's_add_u32 m0, s51, {slot*12288+i*1024}')
                    if r3==0: a(f's_add_u32 s44, s50, {(128*bp+32*aa)*12288}')
                    a(f'buffer_load_dwordx4 v{136+r3}, {W1}, s44 offen lds', tag=tag)
            def rd(slot,bp=bp):
                for bb in range(2):
                    for T in range(3):
                        for q4 in range(4):
                            a(f'ds_read_b64_tr_b16 {self.trdst(mp,(2*bp+bb)*3+T,q4)}, v17 offset:{slot*12288+(64*bb+32*(q4>>1)+4*(q4&1))*96+32*T}')
            stages.append((iss,rd))
        for U2 in range(3):
            for hT in range(2):
                def iss(slot,tag,U2=U2,hT=hT):
                    for i in range(10):
                        aa,r5=divmod(i,5)
                        a(f's_add_u32 m0, s51, {slot*12288+i*1024}')
                        if r5==0: a(f's_add_u32 s44, s52, {(64*U2+32*aa)*1280+160*hT}')
                        a(f'buffer_load_dwordx4 v{139+r5}, {W2}, s44 offen lds', tag=tag)
                def rd(slot,U2=U2,hT=hT):
                    for T in range(5):
                        for q4 in range(4):
                            a(f'ds_read_b64_tr_b16 {self.trdst(mp,30+(5*hT+T)*3+U2,q4)}, v18 offset:{slot*12288+(32*(q4>>1)+16*(q4&1))*160+32*T}')
                stages.append((iss,rd))
        self.run_stages(stages)
        self.store_lds_frags()
        a(f'''v_and_b32 v2, 15, v1
        v_lshrrev_b32 v3, 4, v1
        v_lshrrev_b32 v4, 3, v2
        v_lshlrev_b32 v4, 4, v4
        v_bfe_u32 v5, v2, 1, 1
        v_lshl_add_u32 v4, v5, 3, v4
        v_and_b32 v5, 1, v3
        v_lshl_add_u32 v4, v5, 2, v4
        v_lshrrev_b32 v5, 1, v3
        v_lshl_add_u32 v4, v5, 1, v4
        v_lshlrev_b32 v4, 4, v4
        v_bfe_u32 v5, v2, 2, 1
        v_lshl_add_u32 v4, v5, 3, v4
        v_and_b32 v5, 1, v2
        v_lshl_add_u32 v4, v5, 1, v4''')
        for T in range(3):
            a(f'''s_mul_i32 s44, {WAVE}, 3
            s_add_u32 s44, s44, {T}
            s_lshr_b32 s45, s44, 1
            s_and_b32 s46, s44, 1
            s_lshl_b32 s47, s45, 9
            s_lshl_b32 s48, s46, 2
            s_add_u32 s47, s47, s48
            s_add_u32 s47, s47, {VM}
            v_add_u32 v{14+T}, s47, v4
            s_lshl_b32 s47, s45, 10
            s_lshl_b32 s48, s46, 3
            s_add_u32 s47, s47, s48
            v_add_u32 v{17+T}, s47, v13''')
        a(f's_mov_b32 {STEP}, {PAR}\ns_barrier')
        self.x_dma()
        self.wait_start()
        a(f's_xor_b32 s44, {SEL}, {PAR}\ns_xor_b32 s44, s44, 1\ns_and_b32 s44, s44, 1\ns_lshl_b32 s44, s44, 13\ns_add_u32 s61, s61, s44')
        a.label('L_V_loop'); a.reset_hist()
        self.stamp(0)
        self.stage(mp,0)
        ACC=24; XF=72
        a('s_waitcnt vmcnt(0)\ns_barrier')
        def xrd(ks):
            for mt in range(2):
                a(f'ds_read_b128 {vr(XF+8*(ks&1)+4*mt)}, v13 offset:{(ks*2+mt)*1024}', tag=('xf',ks))
        xrd(0)
        for ks in range(20):
            if ks+1<20: xrd(ks+1)
            a.wait_lg(('xf',ks))
            for T in range(3):
                f=(ks>>1)*3+T
                self.need_w(mp,f)
                for mt in range(2):
                    d=vr(ACC+8*T+4*mt)
                    a(f'v_mfma_f32_16x16x32_bf16 {d}, {self.wreg(mp,f,ks&1)}, {vr(XF+8*(ks&1)+4*mt)}, {d if ks else 0}')
            if ks==5: self.stage(mp,1)
        a('s_barrier')
        for T in range(3):
            for mt in range(2):
                s=ACC+8*T+4*mt; d=XF+4*T+2*mt
                a(f'v_cvt_pk_bf16_f32 v{d}, v{s}, v{s+1}\nv_cvt_pk_bf16_f32 v{d+1}, v{s+2}, v{s+3}')
                a(f'ds_write_b64 v{17+T}, v[{d}:{d+1}] offset:{mt*6144}')
        a('s_waitcnt lgkmcnt(0)\ns_barrier')
        VXF=24
        for i in range(12):
            a(f'ds_read_b128 {vr(VXF+4*i)}, v13 offset:{i*1024}')
        a('s_waitcnt lgkmcnt(0)\ns_barrier')
        a(f's_add_u32 s63, {STEP}, 2\ns_min_u32 s63, s63, 63')
        self.x_dma('s63')
        a(f'''
        s_mul_i32 s50, {STEP}, {40*32*1024}
        s_mul_i32 s44, {WAVE}, {10*32*1024}
        s_add_u32 s50, s50, s44
        s_lshl_b32 s44, {HEAD}, 10
        s_add_u32 s50, s50, s44
        s_add_u32 s50, s50, {U0}''')
        UA=72
        def ufin(T):
            b=UA+8*(T&1); d=4 if T&1 else 20
            a(f'''v_cvt_pk_bf16_f32 v{d}, v{b}, v{b+1}
            v_cvt_pk_bf16_f32 v{d+1}, v{b+4}, v{b+5}
            v_cvt_pk_bf16_f32 v{d+2}, v{b+2}, v{b+3}
            v_cvt_pk_bf16_f32 v{d+3}, v{b+6}, v{b+7}
            s_add_u32 s44, s50, {T*32768}
            buffer_store_dwordx4 {vr(d)}, v12, {WS}, s44 offen sc1''')
        for T in range(10):
            for u in range(6):
                f=30+3*T+(u>>1)
                self.need_w(mp,f)
                for mt in range(2):
                    d=vr(UA+8*(T&1)+4*mt)
                    a(f'v_mfma_f32_16x16x32_bf16 {d}, {vr(VXF+24*mt+4*u)}, {self.wreg(mp,f,u&1)}, {d if u else 0}')
                if u==2 and T>0: ufin(T-1)
        ufin(9)
        self.stage(mp,0)
        VA=64
        for i in range(12): a(f'v_mov_b32 v{VA+i}, 0')
        a('s_waitcnt vmcnt(0)\ns_barrier')
        self.set_flag(0)
        a(f's_lshr_b32 s44, {STEP}, 1\ns_and_b32 s44, s44, 1\ns_mul_i32 s45, s44, {40*16384}\ns_add_u32 s52, s61, s45\ns_xor_b32 s44, s44, 1\ns_mul_i32 s45, s44, {40*16384}\ns_add_u32 s53, s61, s45')
        cold=[]
        def work(b):
            for T in range(3):
                f=b*3+T
                self.need_w(mp,f)
                a(f'v_smfmac_f32_16x16x64_bf16 {vr(VA+4*T)}, {vr(self.MF+4*b)}, {self.wreg(mp,f)}, v9')
            if b==2: self.stage(mp,1)
        self.m_stream(work,cold)
        self.stamp(3)
        TA=24
        for i in range(36): a(f'v_mov_b32 v{TA+i}, 0')
        for T in range(3):
            b=VA+4*T
            a(f'''v_permlane32_swap_b32 v{b}, v{b+2}
            v_permlane32_swap_b32 v{b+1}, v{b+3}
            v_add_f32 v{b}, v{b}, v{b+2}
            v_add_f32 v{b+1}, v{b+1}, v{b+3}
            v_cvt_pk_bf16_f32 v{b}, v{b}, v{b+1}
            ds_write_b16 v{14+T}, v{b}
            ds_write_b16_d16_hi v{14+T}, v{b} offset:16''')
        for i in range(36,40): a(f'v_mov_b32 v{TA+i}, 0')
        a('s_waitcnt lgkmcnt(0)\ns_barrier')
        self.stamp(4)
        VF=76
        for U2 in range(3):
            a(f'ds_read_b128 {vr(VF+4*U2)}, v13 offset:{VM-self.XB+U2*1024}', tag=('vf',U2))
        def tfin(tiles, inst):
            t0,t1,t2,t3=tiles
            prs=[(t0,t2)] + ([(t1,t3)] if t1 is not None else [])
            for (x,y) in prs:
                for r in range(4): a(f'v_permlane32_swap_b32 v{TA+4*x+r}, v{TA+4*y+r}')
                for r in range(4): a(f'v_add_f32 v{TA+4*x+r}, v{TA+4*x+r}, v{TA+4*y+r}')
            d=4 if inst&1 else 20
            x=TA+4*t0; y=TA+4*(t1 if t1 is not None else t0)
            a(f'''v_cvt_pk_bf16_f32 v{d}, v{x}, v{x+1}
            v_cvt_pk_bf16_f32 v{d+1}, v{x+2}, v{x+3}
            v_cvt_pk_bf16_f32 v{d+2}, v{y}, v{y+1}
            v_cvt_pk_bf16_f32 v{d+3}, v{y+2}, v{y+3}
            v_permlane16_swap_b32 v{d}, v{d+2}
            v_permlane16_swap_b32 v{d+1}, v{d+3}''')
            for k in range(4): a(f'v_min_u32 v{d+k}, -2, v{d+k}')
        for T in range(10):
            for U2 in range(3):
                f=30+3*T+U2
                self.need_w(mp,f); a.wait_lg(('vf',U2))
                a(f'v_smfmac_f32_16x16x64_bf16 {vr(TA+4*T)}, {vr(VF+4*U2)}, {self.wreg(mp,f)}, v9')
            if T in (4,8):
                i=(T-4)//4
                tfin([4*i,4*i+1,4*i+2,4*i+3],i)
                a(f's_add_u32 s44, s52, {i*4*16384}\nbuffer_store_dwordx4 {vr(4 if i&1 else 20)}, v8, {WS}, s44 offen sc1')
        tfin([8,None,9,None],2)
        a(f'''v_lshrrev_b32 v2, 5, v1
        v_lshlrev_b32 v2, 14, v2
        v_and_b32 v3, 15, v1
        v_lshl_add_u32 v2, v3, 4, v2
        s_add_u32 s44, s52, {8*16384}
        s_mov_b32 exec_lo, 0xffff
        s_mov_b32 exec_hi, 0xffff
        buffer_store_dwordx4 v[20:23], v2, {WS}, s44 offen sc1
        s_mov_b64 exec, -1''')
        self.stamp(5)
        for k in range(4): a(f'v_mov_b32 v{4+k}, -1')
        poisonT('s53','v[4:7]')
        self.stamp(6); self.stamp_out()
        a(f's_add_u32 {STEP}, {STEP}, 2\ns_cmp_lt_u32 {STEP}, 64\ns_cbranch_scc1 L_V_loop\ns_endpgm')
        self.m_cold(cold)

    def role_R(self):
        a=self.a
        a.label('L_R'); a.reset_hist()
        J='s36'
        self.srd(OUT, 90, 2048*2560); self.srd(W1, 70, 8*1280)
        a(f'''s_sub_u32 {J}, {SLOT}, 16
        v_lshlrev_b32 v12, 4, v1
        v_lshlrev_b32 v13, 2, v1
        s_mul_i32 s61, {GRP}, 40960
        s_lshl_b32 s44, {J}, 10
        s_add_u32 s61, s61, s44
        s_add_u32 s44, {WAVE}, {QUAD}
        s_and_b32 s44, s44, 3
        s_lshl_b32 s45, s44, 8
        s_add_u32 s61, s61, s45
        s_add_u32 s61, s61, {M0W}
        v_mov_b32 v20, -1''')
        for sl in range(4):
            a(f's_add_u32 s45, s61, {sl*10240}\nbuffer_store_dword v20, v13, {WS}, s45 offen sc1')
        a(f'''v_bfe_u32 v2, v1, 2, 3
        v_mul_u32_u24 v2, 1280, v2
        v_and_b32 v3, 3, v1
        v_lshl_add_u32 v2, v3, 3, v2
        v_lshrrev_b32 v3, 5, v1
        v_lshl_add_u32 v2, v3, 2, v2
        s_lshl_b32 s45, {J}, 7
        s_lshl_b32 s44, s44, 5
        s_add_u32 s45, s45, s44
        buffer_load_dword v21, v2, {W1}, s45 offen''')
        self.arrive()
        a(f'''v_and_b32 v2, 15, v1
        v_lshrrev_b32 v3, 4, v1
        v_and_b32 v4, 8, v1
        v_cmp_eq_u32 vcc, 0, v4
        v_mov_b32 v4, 0xeeee
        v_mov_b32 v5, 0x4444
        v_cndmask_b32 v9, v4, v5, vcc
        v_lshrrev_b32 v4, 5, v1
        v_mul_u32_u24 v4, 640, v4
        v_and_b32 v5, 31, v1
        v_lshl_add_u32 v14, v5, 4, v4
        v_mul_u32_u24 v4, 640, v3
        v_lshl_add_u32 v15, v2, 4, v4
        v_mul_u32_u24 v4, 2560, v3
        v_lshl_add_u32 v16, v2, 4, v4
        v_lshlrev_b32 v17, 7, v1
        s_lshl_b32 s44, {WAVE}, 11
        v_add_u32 v18, s44, v12
        v_bfe_u32 v4, v1, 4, 1
        v_lshlrev_b32 v4, 8, v4                  ; (i>>2)*256
        v_and_b32 v5, 3, v1
        v_lshl_add_u32 v4, v5, 6, v4             ; + jj*64
        v_lshrrev_b32 v5, 5, v1
        v_lshl_add_u32 v4, v5, 5, v4             ; + hm*32
        v_bfe_u32 v5, v1, 2, 2
        v_lshl_add_u32 v4, v5, 2, v4             ; + (i&3)*4
        s_and_b32 s44, {WAVE}, 1
        s_lshl_b32 s44, s44, 10
        s_lshr_b32 s45, {WAVE}, 1
        s_lshl_b32 s45, s45, 9
        s_add_u32 s44, s44, s45
        v_add_u32 v19, s44, v4
        v_mul_u32_u24 v4, 2560, v2
        v_lshl_add_u32 v22, v3, 3, v4
        s_xor_b32 s44, {PAR}, 1
        s_lshl_b32 s44, s44, 5
        s_lshl_b32 s45, {WAVE}, 3
        s_add_u32 s44, s44, s45
        s_lshl_b32 s60, s44, 7
        s_add_u32 s60, s60, {FL0}
        s_add_u32 s59, s60, 8192''')
        for vt in range(4):
            a(f's_add_u32 s44, {QUAD}, {vt}\ns_and_b32 s44, s44, 3\ns_lshl_b32 s45, {J}, 2\ns_add_u32 s{64+vt}, s44, s45')
        PM=40
        for i in range(8): a(f'v_mov_b32 v{PM+i}, 0')
        self.wait_start()
        a(f'''s_xor_b32 s44, {SEL}, {PAR}
        s_and_b32 s44, s44, 1
        s_lshl_b32 s58, s44, 13
        s_mov_b32 {STEP}, {PAR}
        s_cmp_lg_u32 {PAR}, 0
        s_cbranch_scc1 L_R_loop
        v_min_u32 v21, -2, v21
        buffer_store_dword v21, v13, {WS}, s61 offen sc1
        s_mov_b32 {STEP}, 2''')
        a.label('L_R_loop'); a.reset_hist()
        PF=24; TF=48; UF=80; AC=208; XA=224
        a(f's_sub_u32 s56, {STEP}, 1')
        self.stamp(0)
        self.wait_flags('v17','s60',STEP)
        self.stamp(1)
        a(f's_mul_i32 s50, s56, {40*32*1024}\ns_lshl_b32 s44, {WAVE}, 13\ns_add_u32 s50, s50, s44\ns_add_u32 s50, s50, {U0}')
        for vt in range(4):
            a(f's_lshl_b32 s44, s{64+vt}, 15\ns_add_u32 s44, s44, s50\ns_add_u32 s45, s44, 4096')
            for h in range(8):
                a(f'buffer_load_dwordx4 {vr(UF+32*vt+4*h)}, v12, {WS}, s{44+(h>>2)} offen offset:{(h&3)*1024} sc1')
        a(f'''s_lshr_b32 s44, s56, 1
        s_and_b32 s44, s44, 1
        s_mul_i32 s50, s44, {40*16384}
        s_add_u32 s50, s50, s58
        s_lshl_b32 s45, {WAVE}, 11
        s_add_u32 s50, s50, s45
        s_lshl_b32 s51, s44, 18
        s_lshl_b32 s45, {QUAD}, 2
        s_add_u32 s45, s45, {WAVE}
        s_lshl_b32 s45, s45, 14
        s_add_u32 s51, s51, s45
        s_add_u32 s51, s51, s58
        s_add_u32 s51, s51, {P0}''')
        for vt in range(4):
            a(f's_lshl_b32 s44, s{64+vt}, 14\ns_add_u32 s{52+vt}, s50, s44')
        for i in range(16): a(f'v_mov_b32 v{AC+i}, 0')
        a(f's_mov_b32 {CNT}, 0')
        l=a.newlabel('RP'); lo=a.newlabel('RPO')
        a.label(l)
        for vt in range(4):
            for u in range(2):
                a(f'buffer_load_dwordx4 {vr(TF+8*vt+4*u)}, v12, {WS}, s{52+vt} offen offset:{u*1024} sc1')
        for k in range(4):
            a(f'buffer_load_dwordx4 {vr(PF+4*k)}, v14, {WS}, s51 offen offset:{k*1280} sc1')
        a('s_mov_b32 exec_lo, 0x00ff00ff\ns_mov_b32 exec_hi, 0x00ff00ff')
        for u in range(2):
            a(f'buffer_load_dwordx4 {vr(PM+4*u)}, v15, {WS}, s51 offen offset:{512+u*2560} sc1')
        a('s_mov_b64 exec, -1\ns_waitcnt vmcnt(0)')
        self.check(range(PF,TF+32))
        a(f's_cbranch_vccz {lo}')
        self.timeout(l)
        a.label(lo)
        self.stamp(2)
        for vt in (0,2,1,3):
            for k in range(4):
                a(f'v_smfmac_f32_16x16x64_bf16 {vr(AC+4*vt)}, {vr(PF+4*k)}, {vr(UF+32*vt+8*k,8)}, v9')
            for u in range(2):
                a(f'v_mfma_f32_16x16x32_bf16 {vr(AC+4*vt)}, {vr(PM+4*u)}, {vr(TF+8*vt+4*u)}, {vr(AC+4*vt)}')
        for p in range(2):
            x=AC+4*p; y=AC+8+4*p
            for r in range(4): a(f'v_permlane32_swap_b32 v{x+r}, v{y+r}')
            for r in range(4): a(f'v_add_f32 v{x+r}, v{x+r}, v{y+r}')
            a(f'ds_write_b128 v18, {vr(x)} offset:{p*1024}')
        a(f'''s_lshr_b32 s44, {STEP}, 1
        s_and_b32 s45, s44, 3
        s_mul_i32 s45, s45, 10240
        s_add_u32 s45, s45, s61
        s_add_u32 s44, s44, 3
        s_and_b32 s44, s44, 3
        s_mul_i32 s44, s44, 10240
        s_add_u32 s44, s44, s61
        v_add_u32 v3, 4096, v19
        s_waitcnt lgkmcnt(0)
        s_barrier
        ds_read2_b32 v[{AC}:{AC+1}], v19 offset0:0 offset1:4
        v_add_u32 v2, 2048, v19
        ds_read2_b32 v[{AC+2}:{AC+3}], v2 offset0:0 offset1:4
        ds_read2_b32 v[{AC+4}:{AC+5}], v3 offset0:0 offset1:4
        v_add_u32 v2, 2048, v3
        ds_read2_b32 v[{AC+6}:{AC+7}], v2 offset0:0 offset1:4
        s_cmp_eq_u32 {FAST}, 0
        s_waitcnt lgkmcnt(2)
        v_add_f32 v{AC}, v{AC}, v{AC+2}
        v_add_f32 v{AC+1}, v{AC+1}, v{AC+3}
        s_waitcnt lgkmcnt(0)
        v_add_f32 v{AC+4}, v{AC+4}, v{AC+6}
        v_add_f32 v{AC+5}, v{AC+5}, v{AC+7}
        v_add_f32 v{AC}, v{AC}, v{AC+4}
        v_add_f32 v{AC+1}, v{AC+1}, v{AC+5}
        v_cvt_pk_bf16_f32 v2, v{AC}, v{AC+1}
        v_min_u32 v2, -2, v2
        s_cbranch_scc1 L_R_slow
        buffer_store_dword v2, v13, {WS}, s45 offen
        buffer_store_dword v20, v13, {WS}, s44 offen
        s_branch L_R_x''')
        a.label('L_R_slow')
        a(f'buffer_store_dword v2, v13, {WS}, s45 offen sc1\nbuffer_store_dword v20, v13, {WS}, s44 offen sc1')
        a.label('L_R_x')
        self.stamp(3)
        if self.o.get('dumpm'):
            a(f's_mul_i32 s44, {STEP}, 10240\ns_sub_u32 s46, s61, {M0W}\ns_mul_i32 s47, {GRP}, 40960\ns_sub_u32 s46, s46, s47\ns_add_u32 s44, s44, s46\ns_add_u32 s44, s44, {DBGW}\nbuffer_store_dword v2, v13, {WS}, s44 offen')
        self.wait_flags('v17','s59',STEP)
        self.stamp(4)
        PXF=112
        a(f's_lshl_b32 s44, s56, 5\ns_lshl_b32 s45, {WAVE}, 3\ns_add_u32 s44, s44, s45\ns_mul_i32 s50, s44, 2560\ns_add_u32 s50, s50, {PX0}')
        for h in range(8):
            a(f's_add_u32 s44, s50, {h*2560}')
            for mt in range(2):
                a(f'buffer_load_dwordx4 {vr(PXF+8*h+4*mt)}, v12, {WS}, s44 offen offset:{mt*1024} sc1', tag=('px',h))
        for u in range(2):
            a(f's_add_u32 s44, s50, {u*4*2560}')
            for mt in range(2):
                a(f'buffer_load_dwordx4 {vr(PXF+64+8*u+4*mt)}, v16, {WS}, s44 offen offset:{2048+mt*256} sc1', tag=('px',8+u))
        for h in range(10):
            a.wait_vm(('px',h))
            A = vr(UF+4*h) if h<8 else vr(TF+4*(h-8))
            for mt in range(2):
                d=vr(XA+4*mt)
                a(f'v_mfma_f32_16x16x32_bf16 {d}, {A}, {vr(PXF+8*h+4*mt)}, {d if h else 0}')
        for mt in range(2):
            a(f'ds_write_b128 v18, {vr(XA+4*mt)} offset:{8192+mt*1024}')
        a(f'''s_waitcnt lgkmcnt(0)
        s_barrier
        s_cmp_ge_u32 {WAVE}, 2
        s_cbranch_scc1 L_R_next
        s_lshl_b32 s44, {WAVE}, 10
        v_add_u32 v2, s44, v12''')
        for w in range(4):
            a(f'ds_read_b128 {vr(XA+4*w)}, v2 offset:{8192+w*2048}')
        a(f'''s_lshl_b32 s44, s56, 1
        s_add_u32 s44, s44, {WAVE}
        s_mul_i32 s44, s44, {16*2560}
        s_lshl_b32 s45, s64, 5
        s_add_u32 s44, s44, s45
        s_waitcnt lgkmcnt(0)''')
        for r in range(4):
            a(f'v_add_f32 v{XA+r}, v{XA+r}, v{XA+4+r}\nv_add_f32 v{XA+8+r}, v{XA+8+r}, v{XA+12+r}')
        for r in range(4): a(f'v_add_f32 v{XA+r}, v{XA+r}, v{XA+8+r}')
        a(f'''v_cvt_pk_bf16_f32 v4, v{XA}, v{XA+1}
        v_cvt_pk_bf16_f32 v5, v{XA+2}, v{XA+3}
        buffer_store_dwordx2 v[4:5], v22, {OUT}, s44 offen''')
        a.label('L_R_next')
        self.stamp(5); self.stamp_out()
        a(f's_add_u32 {STEP}, {STEP}, 2\ns_cmp_le_u32 {STEP}, 64\ns_cbranch_scc1 L_R_loop\ns_endpgm')

    def b_wreg(self, T, ks):
        f=ks*5+T
        return f'a[{4*f}:{4*f+3}]' if f<64 else f'v[{112+4*(f-64)}:{112+4*(f-64)+3}]'
    def b_load_w(self, srd, stride):
        a=self.a
        a(f's_mul_i32 s51, {WAVE}, 36864')
        for r5 in range(5):
            a(f'v_add_u32 v2, {64*r5}, v1')
            self.divmod_const('v3','v4','v2',10)
            a(f'v_mul_u32_u24 v3, {stride}, v3\nv_lshl_add_u32 v{16+r5}, v4, 4, v3')
        a(f"""v_lshrrev_b32 v2, 4, v1
        v_bfe_u32 v3, v1, 2, 2
        v_lshl_add_u32 v2, v2, 3, v3
        v_mul_u32_u24 v2, 160, v2
        v_and_b32 v3, 3, v1
        v_mul_u32_u24 v3, 40, v3
        v_add3_u32 v21, v2, v3, s51""")
        stages=[]
        for b in range(10):
            def iss(slot,tag,b=b):
                for i in range(10):
                    aa,r5=divmod(i,5)
                    a(f's_add_u32 m0, s51, {slot*12288+i*1024}')
                    if r5==0: a(f's_add_u32 s44, s50, {(64*b+32*aa)*stride}')
                    a(f'buffer_load_dwordx4 v{16+r5}, {srd}, s44 offen lds', tag=tag)
            def rd(slot,b=b):
                for kk in range(2):
                    for T in range(5):
                        w=self.b_wreg(T,2*b+kk); t=w[0]; base=int(w[2:w.index(':')])
                        for u in range(2):
                            a(f'ds_read_b64_tr_b16 {t}[{base+2*u}:{base+2*u+1}], v21 offset:{slot*12288+(32*kk+4*u)*160+8*T}')
            stages.append((iss,rd))
        self.run_stages(stages)
        a('s_waitcnt lgkmcnt(0)')
    def b_xdma(self, srd, flags=''):
        a=self.a
        a(f's_mul_i32 s45, {WAVE}, 320\ns_add_u32 s44, s52, s45\ns_add_u32 s45, s44, 20480\ns_mul_i32 s46, {WAVE}, 10240\ns_add_u32 s46, s46, s53')
        for i in range(10):
            a(f's_add_u32 m0, s46, {i*1024}')
            if i>=2: a(f's_add_u32 s{44+(i&1)}, s{44+(i&1)}, 64')
            a(f'buffer_load_dwordx4 v11, {srd}, s{44+(i&1)} offen {flags} lds')
    def b_gemm(self, ACC, XF):
        a=self.a
        def xrd(ks):
            for mt in range(2):
                a(f'ds_read_b128 {vr(XF+8*(ks&1)+4*mt)}, v13 offset:{(ks*2+mt)*1024}', tag=('xf',ks))
        xrd(0)
        for ks in range(20):
            if ks+1<20: xrd(ks+1)
            a.wait_lg(('xf',ks))
            for T in range(5):
                for mt in range(2):
                    d=vr(ACC+20*mt+4*T)
                    a(f'v_mfma_f32_16x16x32_bf16 {d}, {self.b_wreg(T,ks)}, {vr(XF+8*(ks&1)+4*mt)}, {d if ks else 0}')
    def role_B(self):
        a=self.a
        PQ=BW0; OB=BW0+(8<<20); KVP=BW0+(12<<20); FB=FL0+16384
        XB0=0; WPH=81920; PK=WPH+15360; VI=PK+2*10240+512
        RR='s36'; IT='s35'
        L2E=hex(int.from_bytes(__import__("struct").pack("<f", math.log2(math.e)),"little"))
        a.label('L_B'); a.reset_hist()
        a(f"""s_sub_u32 {RR}, {SLOT}, 26
        s_lshl_b32 s44, {RR}, 3
        s_add_u32 s44, s44, {GRP}
        s_lshl_b32 s60, s44, 7
        s_add_u32 s60, s60, {FB}
        s_mov_b64 exec, 1
        v_mov_b32 v2, 0
        buffer_store_dword v2, v2, {WS}, s60 offen sc1
        s_mov_b64 exec, -1""")
        self.arrive()
        self.srd(XS, 82, 2048*1280); self.srd(W1, 84, 640*3840); self.srd(W2, 86, 32*800); self.srd(OUT, 90, 2048*2560)
        a(f"""v_lshlrev_b32 v12, 4, v1
        v_and_b32 v14, 15, v1                    ; n
        v_lshrrev_b32 v15, 4, v1                 ; G
        v_mul_u32_u24 v11, 1280, v14
        v_lshl_add_u32 v11, v15, 4, v11
        s_mov_b32 s62, {L2E}
        s_cmp_eq_u32 {WAVE}, 3
        s_cbranch_scc1 L_B_w3""")
        a(f's_mul_i32 s50, {WAVE}, 1280\ns_mul_i32 s44, {GRP}, 160\ns_add_u32 s50, s50, s44')
        self.b_load_w(W1, 3840)
        a('s_barrier\ns_branch L_B_go')
        a.label('L_B_w3'); a.reset_hist()
        for i in range(60): a(f'v_mov_b32 v{24+i}, 0')
        a(f"""v_lshrrev_b32 v2, 2, v14
        v_cmp_eq_u32 vcc, v2, v15
        v_mul_u32_u24 v3, 800, v15
        v_and_b32 v4, 3, v1
        v_lshl_add_u32 v3, v4, 1, v3
        s_mul_i32 s44, {GRP}, 3200
        s_mov_b64 exec, vcc""")
        for To in range(5):
            for d in range(20):
                a(f'buffer_load_ushort v{112+To*20+d}, v3, {W2}, s44 offen offset:{d*40+To*8}')
        a('s_waitcnt vmcnt(0)')
        for To in range(5):
            for d in range(0,20,2):
                reg=24+4*(To*3+(d>>3))+((d&7)>>1)
                a(f'v_lshl_or_b32 v{reg}, v{112+To*20+d+1}, 16, v{112+To*20+d}')
        a('s_mov_b64 exec, -1\ns_waitcnt vmcnt(0)\ns_barrier')
        for i in range(15):
            a(f'v_add_u32 v2, {WPH+i*1024}, v12\nds_write_b128 v2, {vr(24+4*i)}')
        a(f'v_mov_b32 v4, 0x3f80\nv_mov_b32 v5, 0\nv_mul_u32_u24 v2, 192, v1\nv_add_u32 v2, {VI+40}, v2')
        for h in range(4): a(f'ds_write_b64 v2, v[4:5] offset:{48*h}')
        for i in range(96): a(f'v_mov_b32 v{112+i}, 0')
        a.label('L_B_go'); a.reset_hist()
        a(f"""s_mul_i32 s52, {RR}, {512*1280}
        s_mov_b32 s53, 0
        s_mov_b32 {IT}, 0""")
        self.b_xdma(XS)
        a(f"""v_mul_u32_u24 v2, 320, v14
        v_mul_u32_u24 v3, 80, v15
        v_add3_u32 v16, v2, v3, 0
        v_add_u32 v16, {PK}, v16
        v_mul_u32_u24 v2, 192, v14
        v_mul_u32_u24 v3, 48, v15
        v_add_u32 v17, v2, v3
        v_add_u32 v17, {VI}, v17
        v_mul_u32_u24 v2, 2560, v14
        v_mul_u32_u24 v3, 80, v15
        v_add_u32 v18, v2, v3
        v_lshrrev_b32 v2, 2, v14
        v_lshl_add_u32 v2, v15, 3, v2            ; 8g+rr
        v_and_b32 v3, 3, v1
        v_mul_u32_u24 v4, 320, v2
        v_lshl_add_u32 v19, v3, 3, v4
        v_add_u32 v19, {PK}, v19
        v_mul_u32_u24 v4, 192, v2
        v_lshl_add_u32 v20, v3, 3, v4
        v_add_u32 v20, {VI}, v20
        v_min_u32 v3, 1, v3
        v_lshl_add_u32 v21, v3, 3, v4
        v_add_u32 v21, {VI+32}, v21
        v_add_u32 v22, {WPH}, v12""")
        ACC=24; XF=64; QB=80; TM=92
        a.label('L_B1'); a.reset_hist()
        a(f"""s_waitcnt vmcnt(0) lgkmcnt(0)
        s_barrier
        v_add_u32 v13, s53, v12
        s_xor_b32 s53, s53, 40960
        s_add_u32 s52, s52, 40960
        s_cmp_ge_u32 {IT}, 15
        s_cbranch_scc1 L_B1_nox""")
        self.b_xdma(XS)
        a.label('L_B1_nox')
        a(f"""s_and_b32 s54, {IT}, 1
        s_cmp_eq_u32 {WAVE}, 3
        s_cbranch_scc1 L_B1_kv
        s_cmp_ge_u32 {IT}, 16
        s_cbranch_scc1 L_B1_next""")
        self.b_gemm(ACC,XF)
        a(f's_cmp_eq_u32 {WAVE}, 2\ns_cbranch_scc1 L_B1_v')
        a(f's_mul_i32 s44, s54, 10240\nv_add_u32 v23, s44, v16')
        a(f's_lshl_b32 s55, {RR}, 4\ns_add_u32 s55, s55, {IT}\ns_mul_i32 s55, s55, {32*2560}\ns_mul_i32 s44, {GRP}, 320\ns_add_u32 s55, s55, s44\ns_add_u32 s55, s55, {PQ}')
        for mt in range(2):
            A=ACC+20*mt
            for i in range(10): a(f'v_cvt_pk_bf16_f32 v{QB+i}, v{A+2*i}, v{A+2*i+1}')
            a(f'v_mov_b32 v{QB+10}, 0\nv_mov_b32 v{QB+11}, 0')
            def wrd(i): a(f'ds_read_b128 {vr(XF+4*(i&3))}, v22 offset:{i*1024}', tag=('wp',i))
            for i in range(3): wrd(i)
            for To in range(5):
                for ks in range(3):
                    i=To*3+ks
                    if i+3<15: wrd(i+3)
                    a.wait_lg(('wp',i))
                    d=vr(A+4*To)
                    a(f'v_mfma_f32_16x16x32_bf16 {d}, {vr(XF+4*(i&3))}, {vr(QB+4*ks)}, {d if ks else 0}')
            for i in range(10):
                a(f'v_cvt_pk_bf16_f32 v2, v{A+2*i}, v{A+2*i+1}\nv_lshlrev_b32 v{A+2*i}, 16, v2\nv_and_b32 v{A+2*i+1}, 0xffff0000, v2')
            a(f'v_max3_f32 v4, v{A}, v{A+1}, v{A+2}\nv_min3_f32 v5, v{A}, v{A+1}, v{A+2}')
            for i in range(3,19,2): a(f'v_max3_f32 v4, v4, v{A+i}, v{A+i+1}\nv_min3_f32 v5, v5, v{A+i}, v{A+i+1}')
            a(f'v_max_f32 v4, v4, v{A+19}\nv_min_f32 v5, v5, v{A+19}')
            for i in range(20): a(f'v_sub_f32 v{TM+i}, v{A+i}, v4\nv_sub_f32 v{A+i}, v5, v{A+i}')
            for i in range(20): a(f'v_mul_f32 v{TM+i}, s62, v{TM+i}\nv_mul_f32 v{A+i}, s62, v{A+i}')
            for i in range(20): a(f'v_exp_f32 v{TM+i}, v{TM+i}\nv_exp_f32 v{A+i}, v{A+i}')
            a(f'v_add_f32 v4, v{TM}, v{TM+1}\nv_add_f32 v5, v{A}, v{A+1}')
            for i in range(2,20): a(f'v_add_f32 v4, v4, v{TM+i}\nv_add_f32 v5, v5, v{A+i}')
            a('v_rcp_f32 v4, v4\nv_rcp_f32 v5, v5')
            for i in range(20): a(f'v_mul_f32 v{TM+i}, v{TM+i}, v4\nv_mul_f32 v{A+i}, v{A+i}, v5')
            for i in range(10): a(f'v_cvt_pk_bf16_f32 v{TM+i}, v{TM+2*i}, v{TM+2*i+1}')
            for i in range(10): a(f'v_cvt_pk_bf16_f32 v{TM+10+i}, v{A+2*i}, v{A+2*i+1}')
            lk=a.newlabel('BK'); le=a.newlabel('BE')
            a(f's_cmp_eq_u32 {WAVE}, 1\ns_cbranch_scc1 {lk}')
            for i in range(5): a(f'buffer_store_dwordx4 {vr(TM+4*i)}, v18, {WS}, s55 offen offset:{16*i}')
            a(f's_add_u32 s55, s55, {16*2560}\ns_branch {le}')
            a.label(lk)
            for i in range(5): a(f'ds_write_b128 v23, {vr(TM+4*i)} offset:{mt*16*320+16*i}')
            a('s_waitcnt lgkmcnt(0)')
            a.label(le); a.settle()
        a('s_branch L_B1_next')
        a.label('L_B1_v'); a.settle()
        a(f's_mul_i32 s44, s54, 6144\nv_add_u32 v23, s44, v17')
        for mt in range(2):
            A=ACC+20*mt
            for i in range(10): a(f'v_cvt_pk_bf16_f32 v{TM+10*mt+i}, v{A+2*i}, v{A+2*i+1}')
            for T in range(5): a(f'ds_write_b64 v23, v[{TM+10*mt+2*T}:{TM+10*mt+2*T+1}] offset:{mt*16*192+8*T}')
        a('s_branch L_B1_next')
        a.label('L_B1_kv'); a.reset_hist()
        a(f"""s_cmp_eq_u32 {IT}, 0
        s_cbranch_scc1 L_B1_next
        s_xor_b32 s54, s54, 1
        s_mul_i32 s44, s54, 10240
        v_add_u32 v2, s44, v19
        s_mul_i32 s44, s54, 6144
        v_add_u32 v3, s44, v20
        v_add_u32 v4, s44, v21""")
        KV=112
        for h in range(4):
            F=24+20*h
            for Tf in range(3):
                for u in range(2): a(f'ds_read_b64_tr_b16 v[{F+4*Tf+2*u}:{F+4*Tf+2*u+1}], v2 offset:{u*4*320+80*h+32*Tf}', tag=('kv',h))
            for Td in range(2):
                for u in range(2): a(f'ds_read_b64_tr_b16 v[{F+12+4*Td+2*u}:{F+12+4*Td+2*u+1}], v{3+Td} offset:{u*4*192+48*h}', tag=('kv',h))
        for h in range(4):
            F=24+20*h
            a.wait_lg(('kv',h))
            for Tf in range(3):
                for Td in range(2):
                    d=vr(KV+24*h+8*Tf+4*Td)
                    a(f'v_mfma_f32_16x16x32_bf16 {d}, {vr(F+4*Tf)}, {vr(F+12+4*Td)}, {d}')
        a.label('L_B1_next')
        a(f's_add_u32 {IT}, {IT}, 1\ns_cmp_le_u32 {IT}, 16\ns_cbranch_scc1 L_B1')
        a.settle()
        a(f"""s_cmp_lg_u32 {WAVE}, 3
        s_cbranch_scc1 L_B2
        v_mul_u32_u24 v2, 192, v14
        v_lshl_add_u32 v2, v15, 4, v2
        s_lshl_b32 s44, {RR}, 5
        s_lshl_b32 s45, {GRP}, 2
        s_add_u32 s44, s44, s45
        s_mul_i32 s44, s44, 6144
        s_add_u32 s44, s44, {KVP}""")
        for h in range(4):
            for Td in range(2):
                for Tf in range(3):
                    a(f'buffer_store_dwordx4 {vr(KV+24*h+8*Tf+4*Td)}, v2, {WS}, s44 offen offset:{64*Tf} sc1')
                a('s_add_u32 s44, s44, 3072')
        a.label('L_B2'); a.reset_hist()
        a(f's_waitcnt vmcnt(0)\ns_barrier\ns_mov_b32 {STEP}, 0')
        self.set_flag(0)
        self.wait_start()
        a(f"""v_and_b32 v3, 3, v1
        v_lshlrev_b32 v23, 10, v3
        s_lshl_b32 s59, {GRP}, 7
        s_add_u32 s59, s59, {FB}
        s_mov_b32 s58, 1""")
        self.wait_flags('v23','s59','s58')
        a(f"""v_mul_u32_u24 v16, 192, v14
        v_lshl_add_u32 v16, v15, 5, v16
        v_lshrrev_b32 v2, 2, v14
        v_add_u32 v2, 16, v2
        v_and_b32 v3, 3, v1
        v_cmp_eq_u32 vcc, 0, v3
        v_mov_b32 v4, 20
        v_cndmask_b32 v2, v4, v2, vcc
        v_mul_u32_u24 v17, 192, v2
        v_lshl_add_u32 v17, v15, 5, v17
        s_lshl_b32 s44, {GRP}, 2
        s_add_u32 s44, s44, {WAVE}
        s_mul_i32 s44, s44, 6144
        s_add_u32 s44, s44, {KVP}""")
        for i in range(128): a(f'v_mov_b32 v{112+i}, 0')
        for p in range(4):
            for t in range(2):
                for ks in range(2):
                    if ks==1: a('s_mov_b64 exec, 0xffff')
                    for hf in range(2):
                        a(f'buffer_load_dwordx4 {vr(112+32*p+16*t+8*ks+4*hf)}, v{16+t}, {WS}, s44 offen offset:{128*ks+16*hf} sc1')
                    if ks==1: a('s_mov_b64 exec, -1')
            a(f's_add_u32 s44, s44, {32*6144}')
        a('s_waitcnt vmcnt(0)')
        for i in range(32):
            a(f'v_add_f32 v{112+i}, v{112+i}, v{144+i}\nv_add_f32 v{176+i}, v{176+i}, v{208+i}')
        for i in range(32): a(f'v_add_f32 v{112+i}, v{112+i}, v{176+i}')
        KF=24
        for i in range(16): a(f'v_cvt_pk_bf16_f32 v{KF+i}, v{112+2*i}, v{112+2*i+1}')
        a(f"""v_mul_u32_u24 v18, 2560, v14
        v_lshl_add_u32 v18, v15, 4, v18
        v_mul_u32_u24 v2, 1280, v14
        v_lshl_add_u32 v19, v15, 3, v2
        v_lshl_add_u32 v20, v15, 1, v2
        s_lshl_b32 s44, {GRP}, 2
        s_add_u32 s44, s44, {WAVE}
        s_mul_i32 s52, s44, 80
        s_mul_i32 s53, s44, 40
        s_mul_i32 s44, {RR}, {512*2560}
        s_add_u32 s52, s52, s44
        s_add_u32 s52, s52, {PQ}
        s_mul_i32 s44, {RR}, {512*1280}
        s_add_u32 s53, s53, s44
        s_add_u32 s53, s53, {OB}
        s_mov_b32 s57, 0x358637bd
        s_mov_b32 {IT}, 0""")
        for i in range(64): a(f'v_mov_b32 v{112+i}, 0')
        a.label('L_B3'); a.reset_hist()
        for t in range(8):
            a(f'buffer_load_dwordx4 {vr(112+8*t)}, v18, {WS}, s52 offen sc1', tag=('pq',t))
            a(f's_mov_b64 exec, 0xffff\nbuffer_load_dwordx4 {vr(116+8*t)}, v18, {WS}, s52 offen offset:64 sc1\ns_mov_b64 exec, -1', tag=('pq',t))
            a(f's_add_u32 s52, s52, {16*2560}')
        a('s_waitcnt vmcnt(0)')
        for t in range(8):
            for tt in range(2):
                d=vr(40+8*t+4*tt)
                a(f'v_mfma_f32_16x16x32_bf16 {d}, {vr(KF+8*tt)}, {vr(112+8*t)}, 0')
                a(f'v_mfma_f32_16x16x32_bf16 {d}, {vr(KF+8*tt+4)}, {vr(116+8*t)}, {d}')
        for t in range(8):
            D=40+8*t
            a(f"""v_cvt_pk_bf16_f32 v2, v{D}, v{D+1}
            v_cvt_pk_bf16_f32 v3, v{D+2}, v{D+3}
            v_cvt_pk_bf16_f32 v4, v{D+4}, v{D+5}
            v_and_b32 v5, 0xffff0000, v4
            v_add_f32 v5, s57, v5
            v_cvt_pk_bf16_f32 v5, v5, v5
            v_and_b32 v5, 0xffff0000, v5
            v_rcp_f32 v5, v5
            v_lshlrev_b32 v{D}, 16, v2
            v_and_b32 v{D+1}, 0xffff0000, v2
            v_lshlrev_b32 v{D+2}, 16, v3
            v_and_b32 v{D+3}, 0xffff0000, v3
            v_lshlrev_b32 v{D+4}, 16, v4
            v_mul_f32 v{D}, v{D}, v5
            v_mul_f32 v{D+1}, v{D+1}, v5
            v_mul_f32 v{D+2}, v{D+2}, v5
            v_mul_f32 v{D+3}, v{D+3}, v5
            v_mul_f32 v{D+4}, v{D+4}, v5
            v_cvt_pk_bf16_f32 v{D}, v{D}, v{D+1}
            v_cvt_pk_bf16_f32 v{D+1}, v{D+2}, v{D+3}
            v_cvt_pk_bf16_f32 v{D+2}, v{D+4}, v{D+4}
            buffer_store_dwordx2 v[{D}:{D+1}], v19, {WS}, s53 offen sc1
            buffer_store_short v{D+2}, v20, {WS}, s53 offen offset:32 sc1
            s_add_u32 s53, s53, {16*1280}""")
        a(f's_add_u32 {IT}, {IT}, 1\ns_cmp_lt_u32 {IT}, 4\ns_cbranch_scc1 L_B3')
        a(f's_waitcnt vmcnt(0)\ns_barrier\ns_mov_b32 {STEP}, 1')
        self.set_flag(0)
        self.srd(W1, 88, 640*1280)
        a(f's_and_b32 s44, {GRP}, 1\ns_mul_i32 s50, s44, 640\ns_mul_i32 s44, {WAVE}, 160\ns_add_u32 s50, s50, s44\ns_mov_b32 s56, s50')
        self.b_load_w(W1, 1280)
        a(f"""v_lshlrev_b32 v23, 7, v1
        s_lshl_b32 s59, {RR}, 10
        s_add_u32 s59, s59, {FB}
        s_mov_b32 s58, 2""")
        self.wait_flags('v23','s59','s58')
        a(f"""s_barrier
        s_lshl_b32 s44, {RR}, 2
        s_lshr_b32 s45, {GRP}, 1
        s_add_u32 s44, s44, s45
        s_mul_i32 s52, s44, {128*1280}
        s_add_u32 s52, s52, {OB}
        s_mul_i32 s55, s44, {128*2560}
        s_add_u32 s55, s55, s56
        s_add_u32 s55, s55, 1280
        s_mov_b32 s53, 0
        s_mov_b32 {IT}, 0
        v_mul_u32_u24 v2, 2560, v14
        v_mul_u32_u24 v3, 40, v15
        v_add_u32 v18, v2, v3""")
        self.b_xdma(WS,'sc1')
        a.label('L_B4'); a.reset_hist()
        a(f"""s_waitcnt vmcnt(0) lgkmcnt(0)
        s_barrier
        v_add_u32 v13, s53, v12
        s_xor_b32 s53, s53, 40960
        s_add_u32 s52, s52, 40960
        s_cmp_ge_u32 {IT}, 3
        s_cbranch_scc1 L_B4_nox""")
        self.b_xdma(WS,'sc1')
        a.label('L_B4_nox')
        self.b_gemm(ACC,XF)
        for mt in range(2):
            A=ACC+20*mt
            for i in range(10): a(f'v_cvt_pk_bf16_f32 v{TM+10*mt+i}, v{A+2*i}, v{A+2*i+1}')
            for T in range(5): a(f'buffer_store_dwordx2 v[{TM+10*mt+2*T}:{TM+10*mt+2*T+1}], v18, {OUT}, s55 offen offset:{8*T}')
            a(f's_add_u32 s55, s55, {16*2560}')
        a(f's_add_u32 {IT}, {IT}, 1\ns_cmp_lt_u32 {IT}, 4\ns_cbranch_scc1 L_B4\ns_endpgm')

    def prologue(self):
        a=self.a
        a.raw(open('cdna_kernels/'+NAME+'.s.ref').read().split('; Override launch')[0].rstrip())
        a.raw(f'; @launch grid=(256,1,1) block=(256,1,1) lds={LDS_BYTES}')
        a.raw(f'.amdgcn_target "amdgcn-amd-amdhsa--gfx950"\n.text\n.globl {KN}\n.p2align 8\n.type {KN},@function')
        a.label(KN)
        a(f'''s_cmp_ge_u32 s2, 256
        s_cbranch_scc1 L_end
        s_load_dwordx16 s[68:83], s[0:1], 0
        s_load_dwordx8 s[84:91], s[0:1], 64
        s_load_dwordx4 s[92:95], s[0:1], 96
        s_getreg_b32 {GRP}, hwreg(HW_REG_XCC_ID)
        s_and_b32 {GRP}, {GRP}, 15
        v_and_b32 v1, 63, v0
        v_lshrrev_b32 v2, 6, v0
        s_mov_b32 {SCAP}, {CAP}
        v_readfirstlane_b32 {WAVE}, v2''')
        if self.o.get('fakexcc'): a(self.o['fakexcc'])
        a('s_waitcnt lgkmcnt(0)')
        self.srd(WS, 94, 0x10000000); self.srd(DBG, 92, 256)
        if self.o.get('prof'): a('s_memrealtime s[96:97]')
        a(f'''s_cmp_lg_u32 {WAVE}, 0
        s_cbranch_scc1 L_tk
        s_mov_b64 exec, 1
        v_mov_b32 v2, 1
        s_lshl_b32 s44, {GRP}, 2
        v_mov_b32 v3, s44
        buffer_atomic_add v2, v3, {DBG}, 0 offen sc0
        s_waitcnt vmcnt(0)
        v_readfirstlane_b32 {SLOT}, v2
        s_cmp_ge_u32 {GRP}, 8
        s_cbranch_scc1 L_ovf
        s_cmp_lt_u32 {SLOT}, 32
        s_cbranch_scc1 L_have''')
        a.label('L_ovf')
        a(f'''v_mov_b32 v2, 1
        v_mov_b32 v3, 64
        buffer_atomic_add v2, v3, {DBG}, 0 offen sc0
        s_waitcnt vmcnt(0)
        v_readfirstlane_b32 s45, v2
        s_mov_b64 exec, 0xffff
        v_lshlrev_b32 v3, 2, v1
        s_mov_b32 {CNT}, 0''')
        a.label('L_ovf_w')
        a(f'buffer_load_dword v2, v3, {DBG}, 0 offen sc1\ns_waitcnt vmcnt(0)\ns_mov_b32 s46, 0')
        for x in range(16): a(f'v_readlane_b32 s44, v2, {x}\ns_add_u32 s46, s46, s44')
        a('s_cmp_ge_u32 s46, 256\ns_cbranch_scc1 L_ovf_a')
        self.timeout('L_ovf_w')
        a.label('L_ovf_a')
        a(f's_mov_b32 {GRP}, 0\ns_mov_b32 {SLOT}, 31')
        for x in range(8):
            a(f'''v_readlane_b32 s44, v2, {x}
            s_min_u32 s44, s44, 32
            s_sub_u32 s46, 32, s44
            s_add_u32 s47, s44, s45
            s_cmp_lt_u32 s45, s46
            s_cselect_b32 {GRP}, {x}, {GRP}
            s_cselect_b32 {SLOT}, s47, {SLOT}
            s_cselect_b32 s45, -1, s45
            s_sub_u32 s45, s45, s46''')
        a('s_mov_b64 exec, 1')
        a.label('L_have')
        a(f'''s_lshl_b32 s44, {GRP}, 8
        s_or_b32 s44, s44, {SLOT}
        v_mov_b32 v2, s44
        v_mov_b32 v3, 0
        ds_write_b32 v3, v2
        s_mov_b64 exec, -1
        s_waitcnt lgkmcnt(0)''')
        a.label('L_tk')
        a(f'''s_barrier
        v_mov_b32 v3, 0
        ds_read_b32 v2, v3
        s_waitcnt lgkmcnt(0)
        v_readfirstlane_b32 s44, v2
        s_barrier
        s_and_b32 {SLOT}, s44, 31
        s_lshr_b32 {GRP}, s44, 8
        s_and_b32 {GRP}, {GRP}, 7
        s_lshr_b32 {PAR}, {GRP}, 2
        s_and_b32 {QUAD}, {GRP}, 3
        s_cmp_lt_u32 {SLOT}, 8
        s_cbranch_scc1 L_S
        s_cmp_lt_u32 {SLOT}, 16
        s_cbranch_scc1 L_V
        s_cmp_lt_u32 {SLOT}, 26
        s_cbranch_scc1 L_R
        s_cmp_lt_u32 {SLOT}, 30
        s_cbranch_scc1 L_B''')
        self.arrive()
        a.label('L_end')
        a('s_endpgm')

    def gen(self):
        self.prologue()
        self.role_R()
        self.role_S()
        self.role_V()
        self.role_B()
        self.a.raw(kernel_desc(KN))
        return self.a.text()

if __name__=='__main__':
    opts={}
    out='cdna_kernels/'+NAME+'.s'
    for arg in sys.argv[1:]:
        if arg.startswith('out='): out=arg[4:]
        else:
            k,_,v=arg.partition('='); opts[k]=v or True
    g=Gen(opts); t=g.gen(); open(out,'w').write(t)
    print('nops inserted', g.a.nops)
    build(out, KN, out[:-2]+'.co')
```
